```python
import torch

def _softmax(x, axis=-1):
    return torch.softmax(x, dim=axis)
def _gelu(x):
    return torch.nn.functional.gelu(x, approximate="tanh")
def _silu(x):
    return torch.nn.functional.silu(x)
def _sigmoid(x):
    return torch.sigmoid(x)
def _layernorm(x, axis=-1, eps=1e-5):
    m = x.mean(dim=axis, keepdim=True)
    v = x.var(dim=axis, keepdim=True, unbiased=False)
    return (x - m) / torch.sqrt(v + eps)
def _scatter_add(tgt, idx, src, axis=0):
    return tgt.clone().index_add_(axis, idx, src)
def _segment_sum(src, seg, n):
    out = torch.zeros((n,) + src.shape[1:], dtype=src.dtype)
    return out.index_add_(0, seg, src)
def _pad(x, pw):
    flat = tuple(v for pair in reversed(pw) for v in pair)
    return torch.nn.functional.pad(x, flat)

kernel_name = 'concat_heads__ssm_conv_s4d__softmax_full_mha__prompt'

def setup_inputs():

    _w = (lambda a: (lambda t: t.to(torch.bfloat16) if t.is_floating_point() else t)(torch.as_tensor(a)))
    def _A_setup():
        Bsz, L, D, N = 1, 2048, 448, 256
        return {
            "u": _w((lambda *s: torch.randn(*s, dtype=torch.bfloat16) * 0.05)(Bsz, L, D)),
            "log_A_real": _w((lambda *s: torch.randn(*s, dtype=torch.bfloat16) * 6.4)(D, N) * 0.5),
            "A_imag": _w((lambda *s: torch.randn(*s, dtype=torch.bfloat16) * 0.1)(D, N) * 3.14),
            "C_real": _w((lambda *s: torch.randn(*s, dtype=torch.bfloat16) * 0.4)(D, N) / N ** 0.5),
            "C_imag": _w((lambda *s: torch.randn(*s, dtype=torch.bfloat16) * 0.4)(D, N) / N ** 0.5),
            "log_dt": _w((lambda *s: torch.randn(*s, dtype=torch.bfloat16) * 0.1)(D) * 0.5 - 4.0),
            "D_skip": _w((lambda *s: torch.randn(*s, dtype=torch.bfloat16) * 0.1)(D)),
        }
    _A_in = _A_setup()

    def _B_setup():
        B, S, D = 1, 2048, 448
        return {
            "x": _w((lambda *s: torch.randn(*s, dtype=torch.bfloat16) * 0.2)(B, S, D)),
            "wqkv": _w((lambda *s: torch.randn(*s, dtype=torch.bfloat16) * 0.2)(D, 3 * D)),
            "wo": _w((lambda *s: torch.randn(*s, dtype=torch.bfloat16) * 0.05)(D, D)),
        }
    _B_in = _B_setup()

    return {
        "A_u": _A_in["u"],
        "A_log_A_real": _A_in["log_A_real"],
        "A_A_imag": _A_in["A_imag"],
        "A_C_real": _A_in["C_real"],
        "A_C_imag": _A_in["C_imag"],
        "A_log_dt": _A_in["log_dt"],
        "A_D_skip": _A_in["D_skip"],
        "B_x": _B_in["x"],
        "B_wqkv": _B_in["wqkv"],
        "B_wo": _B_in["wo"],
    }

def reference(A_u, A_log_A_real, A_A_imag, A_C_real, A_C_imag, A_log_dt, A_D_skip, B_x, B_wqkv, B_wo):
    def _A_ref(u, log_A_real, A_imag, C_real, C_imag, log_dt, D_skip):
        L = u.shape[1]
        dt = torch.exp(log_dt)
        A = -torch.exp(log_A_real) + 1j * A_imag
        C = (C_real + 1j * C_imag) * dt[:, None]
        pos = (lambda x, dt: x.to(dt))(torch.arange(L), log_dt.dtype)
        P = torch.exp((A * dt[:, None])[:, :, None] * pos[None, None, :])
        K = 2.0 * torch.einsum("dn,dnl->dl", C, P).real
        L2 = 2 * L
        u_t = (lambda x, *d: x.permute(*d))(u, 0, 2, 1)
        Kf = (lambda x, *a, **k: torch.fft.rfft(x.float(), *a, **k))(K, L2)
        Uf = (lambda x, *a, **k: torch.fft.rfft(x.float(), *a, **k))(u_t, L2)
        y = (lambda x, *a, **k: torch.fft.irfft(x, *a, **k).to(torch.bfloat16))(Uf * Kf[None, :, :], L2)[:, :, :L]
        y = (lambda x, *d: x.permute(*d))(y, 0, 2, 1)
        return y + u * D_skip[None, None, :]

    def _B_ref(x, wqkv, wo):
        B, S, D = x.shape
        H = 16; Dh = D // H
        qkv = (lambda x, *d: x.permute(*d))((x @ wqkv).reshape(B, S, 3, H, Dh), 2, 0, 3, 1, 4)
        q, k, v = qkv[0], qkv[1], qkv[2]
        scale = Dh ** -0.5
        scores = torch.einsum("bhqd,bhkd->bhqk", q, k) * scale
        p = _softmax(scores, axis=-1)
        o = torch.einsum("bhqk,bhkd->bhqd", p, v)
        return (lambda x, *d: x.permute(*d))(o, 0, 2, 1, 3).reshape(B, S, D) @ wo

    a = _A_ref(A_u, A_log_A_real, A_A_imag, A_C_real, A_C_imag, A_log_dt, A_D_skip)
    b = _B_ref(B_x, B_wqkv, B_wo)
    return torch.concatenate([a, b], axis=-1)
```

```python
import re

TRANS = ('v_exp_', 'v_log_', 'v_rcp_', 'v_rsq_', 'v_sqrt_', 'v_sin_', 'v_cos_')


def regs_of(tok):
    t = tok.strip()
    t = t.lstrip('-').strip('|')
    if t.startswith('abs(') and t.endswith(')'):
        t = t[4:-1]
    m = re.fullmatch(r'([vsa])(\d+)', t)
    if m:
        return m.group(1), {int(m.group(2))}
    m = re.fullmatch(r'([vsa])\[(\d+):(\d+)\]', t)
    if m:
        return m.group(1), set(range(int(m.group(2)), int(m.group(3)) + 1))
    if t == 'vcc':
        return 's', {106, 107}
    if t == 'exec':
        return 's', {126, 127}
    if t == 'm0':
        return 's', {124}
    return None, set()


class Ins:
    def __init__(self, text):
        self.text = text
        code = text.split(';')[0].strip()
        self.label = code.endswith(':')
        self.directive = code.startswith('.') and not self.label
        self.empty = (code == '')
        self.mn = ''
        self.vw = set(); self.vr = set(); self.sw = set(); self.sr = set()
        self.srcc = set(); self.srcab = set(); self.sdata = set()
        if self.label or self.directive or self.empty:
            return
        parts = code.split(None, 1)
        self.mn = mn = parts[0]
        ops = []
        if len(parts) > 1:
            ops = [o.strip() for o in re.split(r',(?![^\[]*\])', parts[1])]
            last = ops[-1].split()
            self.mods = last[1:]
            ops[-1] = last[0]
        else:
            self.mods = []
        self.ops = ops
        self.mfma = mn.startswith('v_mfma') or mn.startswith('v_smfmac')
        self.valu = mn.startswith('v_') and not self.mfma
        self.trans = mn.startswith(TRANS)
        self.vmem = mn.startswith('buffer_') or mn.startswith('global_')
        self.ds = mn.startswith('ds_')
        self.salu = mn.startswith('s_')
        self.dma = self.vmem and 'lds' in self.mods

        def rd(tok):
            k, r = regs_of(tok)
            if k == 'v': self.vr |= r
            elif k == 's': self.sr |= r
            return r if k == 'v' else set()

        def wr(tok):
            k, r = regs_of(tok)
            if k == 'v': self.vw |= r
            elif k == 's': self.sw |= r

        if self.mfma:
            self.passes = 8 if '32x32' in mn else 4
            wr(ops[0])
            self.srcab = rd(ops[1]) | rd(ops[2])
            if mn.startswith('v_smfmac'):
                self.srcab |= rd(ops[3])
                self.srcc = rd(ops[0])
            else:
                self.srcc = rd(ops[3])
        elif self.valu:
            wr(ops[0])
            rest = ops[1:]
            if mn.startswith(('v_add_co', 'v_sub_co', 'v_addc_co')):
                wr(ops[1]); rest = ops[2:]
            for o in rest: rd(o)
            if mn.startswith('v_permlane') and 'swap' in mn:
                rd(ops[0]); wr(ops[1])
            if mn.startswith(('v_fmac', 'v_writelane')) or '_dpp' in mn:
                rd(ops[0])
        elif self.ds:
            if mn.startswith(('ds_read', 'ds_bpermute', 'ds_permute', 'ds_swizzle')):
                wr(ops[0])
                for o in ops[1:]: rd(o)
            else:
                for o in ops: rd(o)
        elif self.vmem:
            if mn.startswith(('buffer_wbl2', 'buffer_inv')):
                pass
            elif 'load' in mn and not self.dma:
                wr(ops[0])
                for o in ops[1:]: rd(o)
            else:
                for o in ops: rd(o)
                if 'store' in mn and ('x4' in mn or 'x3' in mn):
                    self.sdata = regs_of(ops[0])[1]
            if self.dma: self.sr |= {124}
        elif self.salu:
            nodst = mn.startswith(('s_cmp', 's_cbranch', 's_branch', 's_waitcnt', 's_barrier', 's_nop', 's_sleep',
                                   's_setprio', 's_endpgm', 's_bitcmp'))
            if ops and not nodst:
                wr(ops[0])
                for o in ops[1:]: rd(o)
                if 'saveexec' in mn: self.sw |= {126, 127}
            else:
                for o in ops: rd(o)
            if mn.startswith('s_cbranch_vcc'): self.sr |= {106, 107}

    def states(self):
        if self.label or self.directive or self.empty: return 0
        if self.mn == 's_nop': return int(self.ops[0], 0) + 1
        return 1


def need(p, c):
    n = 0
    if p.valu:
        if c.mfma and (p.vw & c.vr): n = max(n, 2)
        if p.trans and c.valu and (p.vw & (c.vr | c.vw)): n = max(n, 1)
        if p.trans and (c.ds or c.vmem) and (p.vw & c.vr): n = max(n, 1)
        if c.mn.startswith(('v_readfirstlane', 'v_readlane')) and (p.vw & c.vr): n = max(n, 1)
        if (c.mn.startswith('v_permlane') or '_dpp' in c.mn) and (p.vw & c.vr): n = max(n, 2)
        if p.sw:
            if c.vmem and (p.sw & c.sr): n = max(n, 5)
            if c.valu and (p.sw & c.sr):
                n = max(n, 4 if c.mn.startswith(('v_readlane', 'v_writelane')) else 2)
            if c.salu and (p.sw & c.sr): n = max(n, 2)
    if p.mfma:
        big = p.passes == 8
        if c.mfma:
            if p.vw & c.srcab: n = max(n, 12 if big else 8)
            if p.vw & c.srcc:
                if not (p.vw == c.srcc and p.passes == c.passes): n = max(n, 10 if big else 6)
        elif (c.valu or c.ds or c.vmem) and (p.vw & (c.vr | c.vw)):
            n = max(n, 12 if big else 8)
        if c.valu and (p.srcc & c.vw): n = max(n, 7 if big else 3)
    if p.salu and 124 in p.sw and c.vmem and c.dma: n = max(n, 1)
    if p.vmem and p.sdata and (p.sdata & c.vw): n = max(n, 2)
    return n


class Asm:
    def __init__(self):
        self.L = []
        self.nops_added = 0

    def __call__(self, text):
        for line in text.split('\n'):
            line = line.strip()
            if line == '': continue
            self._one(line)

    def _one(self, line):
        c = Ins(line)
        if not (c.label or c.directive or c.empty):
            dist = 0
            pad = 0
            for p in reversed(self.L):
                if dist >= 13: break
                if p.label or p.directive or p.empty: continue
                if p.mn in ('s_branch', 's_endpgm'): break
                k = need(p, c)
                if k > dist: pad = max(pad, k - dist)
                dist += p.states()
            if pad:
                self.L.append(Ins(f's_nop {pad-1}'))
                self.nops_added += 1
        self.L.append(c)

    def text(self):
        out = []
        for i in self.L:
            out.append(i.text if (i.label or i.directive) else '    ' + i.text)
        return '\n'.join(out) + '\n'


def v(i, n=1):
    return f'v{i}' if n == 1 else f'v[{i}:{i+n-1}]'


def s(i, n=1):
    return f's{i}' if n == 1 else f's[{i}:{i+n-1}]'
```

```python
import sys, struct, math
from asmlib import Asm, v, s

NAME = 'concat_heads__ssm_conv_s4d__softmax_full_mha__prompt'

EPOCH = 0
FKV = 0x1000
FO = 0x9000
FU = 0x11000
FY = 0x19000
ONES = 0x21000
STAMP = 0x50000
KWS = 0x100000
VWS = 0x2C0000
OWS = 0x480000
UT = 0x680000
YT = 0x840000
WS_SIZE = 0xA00000
KT_STRIDE = 28672
SPIN = 40000


def f2u(x):
    return struct.unpack('<I', struct.pack('<f', x))[0]


def hx(x):
    return f'0x{x & 0xffffffff:08x}'


HEADER = """; Kernarg layout for this problem (104 bytes, ptrs only, base s[0:1]):
;   offset  80: d_out     shape=(1, 2048, 896) dtype=bfloat16
; Workgroups 0..255: attention branch (QKV projection, softmax attention, output projection).
; @launch grid=(512,1,1) block=(256,1,1) lds=81920
"""


class Gen:
    def __init__(self, **opt):
        self.o = dict(stamps=False, rot=True, prioA=0, prioB=3, force_slow=False)
        self.o.update(opt)
        self.a = Asm()
        self.nlab = 0

    def lab(self, base):
        self.nlab += 1
        return f'L_{base}_{self.nlab}'

    def stamp(self, i):
        if self.o['stamps']:
            self.a(f's_memtime s[{68+2*i}:{69+2*i}]')

    def dump_stamps(self, srd, swave):
        if not self.o['stamps']:
            return
        a = self.a
        a('s_memrealtime s[98:99]')
        a('s_waitcnt lgkmcnt(0)')
        a(f's_lshl_b32 s3, s2, 2\ns_add_u32 s3, s3, {swave}\ns_lshl_b32 s3, s3, 6\ns_add_u32 s3, s3, {STAMP}')
        a('s_mov_b64 exec, 1\nv_mov_b32 v1, 0')
        for i in range(16):
            a(f'v_mov_b32 v2, s{68+2*i}')
            a(f'buffer_store_dword v2, v1, {srd}, s3 offen offset:{4*i}')
        a('s_mov_b64 exec, -1')

    def srd(self, d, b, size):
        self.a(f's_mov_b32 s{d}, s{b}\ns_mov_b32 s{d+1}, s{b+1}\ns_mov_b32 s{d+2}, {size}\ns_mov_b32 s{d+3}, 0x00020000')

    def poll(self, vdst, vaddr, srd, stag, scnt, mask, first_issued=False, sleep=4):
        a = self.a
        lp = self.lab('poll'); dn = self.lab('polldone'); chk = self.lab('pollchk')
        a(f's_mov_b32 {scnt}, {SPIN}')
        self.setexec(mask)
        if first_issued:
            a(f's_branch {chk}')
        a(f'{lp}:')
        a(f'buffer_load_dword {vdst}, {vaddr}, {srd}, 0 offen sc1')
        a(f'{chk}:')
        a('s_waitcnt vmcnt(0)')
        a(f'v_cmp_ne_u32 vcc, {stag}, {vdst}')
        a(f's_sub_u32 {scnt}, {scnt}, 1')
        a(f's_cbranch_vccz {dn}')
        a(f's_cbranch_scc1 {dn}')
        a(f's_sleep {sleep}')
        a(f's_branch {lp}')
        a(f'{dn}:')
        a('s_mov_b64 exec, -1')

    def setexec(self, mask):
        if mask == 'lo32':
            self.a('s_mov_b32 exec_hi, 0')
        else:
            self.a(f's_mov_b64 exec, {mask}')

    def flag_store(self, swave, soff, srd, stag, vt0, vt1):
        a = self.a
        sk = self.lab('noflag')
        a(f's_cmp_lg_u32 {swave}, 0\ns_cbranch_scc1 {sk}')
        a(f'v_mov_b32 {vt0}, 0\nv_mov_b32 {vt1}, {stag}')
        a('s_mov_b64 exec, 1')
        a(f'buffer_store_dword {vt1}, {vt0}, {srd}, {soff} offen sc1')
        a('s_mov_b64 exec, -1')
        a(f'{sk}:')

    def role_B(self):
        a = self.a; o = self.o
        SX, SW, SWS, SWO, SOUT = 's[16:19]', 's[20:23]', 's[24:27]', 's[28:31]', 's[32:35]'
        sW, sH, sT, sJ, sV, sTag = 's36', 's37', 's38', 's39', 's40', 's41'
        sx = [f's{42+p}' for p in range(7)]
        sw = [f's{49+p}' for p in range(7)]
        sM4, sM2, sCnt, sK, sC14 = 's56', 's57', 's58', 's59', 's60'
        t0, t1, t2, t3 = 's61', 's62', 's63', 's64'
        sDq = 's65'
        slot = lambda p: ((p + 1) % 3) * 24576
        WQ, QX, RED = 49152, 0, 8192
        X = lambda p, ss: 24 + 16 * p + 4 * ss
        ACC = [136, 152]
        WF = lambda ss, n: 168 + 8 * ss + 4 * n
        PK = 240

        a('L_roleB:')
        a('s_load_dwordx8 s[4:11], s[0:1], 56')
        a('s_load_dwordx2 s[12:13], s[0:1], 96')
        self.stamp(0)
        a(f's_setprio {o["prioB"]}')
        a('v_lshrrev_b32 v2, 6, v0\nv_and_b32 v1, 63, v0')
        a(f'v_readfirstlane_b32 {sW}, v2')
        a(f's_and_b32 {t0}, s2, 7\ns_lshr_b32 {t1}, s2, 3')
        a(f's_and_b32 {sV}, {t0}, 1\ns_and_b32 {sJ}, {t1}, 7\ns_lshr_b32 {t1}, {t1}, 3')
        a(f's_lshl_b32 {sH}, {sV}, 3\ns_add_u32 {sH}, {sH}, {sJ}')
        a(f's_lshr_b32 {sT}, {t0}, 1\ns_lshl_b32 {sT}, {sT}, 2\ns_add_u32 {sT}, {sT}, {t1}')
        a(f's_mul_i32 {t2}, {sV}, 7\ns_add_u32 {t2}, {t2}, {sJ}\ns_add_u32 {t2}, {t2}, 7')
        a(f's_mul_i32 {t3}, {sV}, 3\ns_add_u32 {t3}, {t3}, {t1}')
        a(f's_cmp_eq_u32 {sJ}, 7\ns_cselect_b32 {t2}, {t3}, {t2}\ns_lshl_b32 {t2}, {t2}, 7')
        a(f's_mul_i32 {sDq}, {sH}, 7\ns_lshr_b32 {sDq}, {sDq}, 1\ns_lshl_b32 {sDq}, {sDq}, 4')
        a(f's_mov_b32 {sK}, {sDq}')
        a(f's_sub_u32 {sDq}, {sDq}, {t2}')
        a(f's_mul_i32 {t3}, {sW}, {16*2688}\ns_add_u32 {t2}, {t2}, {t3}')
        a(f's_mul_i32 {t0}, {sT}, 114688\ns_mul_i32 {t3}, {sW}, 28672\ns_add_u32 {t0}, {t0}, {t3}')
        if o['rot']:
            a(f's_lshl_b32 {t1}, {t1}, 1\ns_add_u32 {t1}, {t1}, {sJ}')
            a(f's_cmp_ge_u32 {t1}, 7\ns_cselect_b32 {t3}, 7, 0\ns_sub_u32 {t1}, {t1}, {t3}')
        else:
            a(f's_mov_b32 {t1}, 0')
        for p in range(7):
            a(f's_lshl_b32 {sx[p]}, {t1}, 7\ns_add_u32 {sx[p]}, {sx[p]}, {t0}')
            a(f's_mul_i32 {sw[p]}, {t1}, {64*2688}\ns_add_u32 {sw[p]}, {sw[p]}, {t2}')
            if p < 6:
                a(f's_add_u32 {t1}, {t1}, 1\ns_cmp_eq_u32 {t1}, 7\ns_cselect_b32 {t1}, 0, {t1}')
        a(f's_lshl_b32 {sM4}, {sW}, 12\ns_lshl_b32 {sM2}, {sW}, 11\ns_add_u32 {sM2}, {sM2}, 16384')
        a('v_lshrrev_b32 v17, 3, v1\nv_and_b32 v18, 7, v1\nv_lshrrev_b32 v19, 4, v1')
        a('v_xor_b32 v20, v18, v19\nv_lshlrev_b32 v20, 4, v20')
        a('v_mul_u32_u24 v2, 896, v17\nv_xor_b32 v21, 64, v20')
        a(f'v_add_u32 v3, {7168-1024}, v2\nv_add_u32 v3, v3, v21\nv_add_u32 v2, v2, v20')
        a(f'v_add_u32 v4, {2*(7168-1024)}, v2\nv_add_u32 v5, {2*(7168-1024)}, v3')
        a('v_and_b32 v20, 1, v19\nv_lshlrev_b32 v20, 2, v20\nv_xor_b32 v20, v18, v20\nv_lshlrev_b32 v20, 4, v20')
        a(f'v_mul_u32_u24 v6, 2688, v17\nv_add_u32 v6, v6, v20\nv_add_u32 v7, {8*2688-1024}, v6')
        a('s_waitcnt lgkmcnt(0)')
        a(f's_load_dword {sTag}, s[12:13], {EPOCH}')
        self.srd(16, 4, 2048 * 896)
        self.srd(20, 6, 448 * 2688)

        def dma(p):
            L = []
            L.append(f's_add_u32 m0, {sM4}, {slot(p)}\nbuffer_load_dwordx4 v2, {SX}, {sx[p]} offen lds')
            for q in range(1, 4):
                L.append(f'buffer_load_dwordx4 v{2+q}, {SX}, {sx[p]} offen offset:{1024*q} lds')
            L.append(f's_add_u32 m0, {sM2}, {slot(p)}\nbuffer_load_dwordx4 v6, {SW}, {sw[p]} offen lds')
            L.append(f'buffer_load_dwordx4 v7, {SW}, {sw[p]} offen offset:1024 lds')
            return L
        for p in range(3):
            for x in dma(p): a(x)
        self.stamp(1)
        self.srd(24, 12, WS_SIZE)
        self.srd(28, 8, 448 * 896)
        self.srd(32, 10, 2048 * 1792)
        a('v_and_b32 v17, 31, v1\nv_lshrrev_b32 v18, 5, v1')
        a('v_bfe_u32 v19, v17, 1, 3\nv_xor_b32 v19, v19, v18\nv_lshlrev_b32 v19, 4, v19')
        a(f'v_lshl_add_u32 v20, v17, 7, {sM4}')
        for ss in range(4):
            a(f'v_xor_b32 v21, {32*ss}, v19\nv_add_u32 v{8+ss}, v20, v21')
        a('v_bfe_u32 v19, v1, 2, 2\nv_lshl_add_u32 v20, v18, 3, v19')
        a('v_and_b32 v21, 3, v1\nv_bfe_u32 v22, v1, 4, 1\nv_lshl_add_u32 v21, v22, 2, v21')
        a('v_and_b32 v22, 1, v1\nv_bfe_u32 v23, v1, 1, 1\nv_lshl_add_u32 v22, v22, 1, v23')
        a('v_and_b32 v23, 4, v21\nv_add_u32 v22, v22, v23')
        a(f'v_lshlrev_b32 v15, 6, v20\nv_lshl_add_u32 v15, v22, 3, v15\nv_add_u32 v15, {WQ}, v15')
        a(f's_cmp_eq_u32 {sV}, 1\ns_cselect_b64 vcc, -1, 0')
        a('v_cndmask_b32 v21, v22, v21, vcc')
        a('v_lshrrev_b32 v19, 1, v19\nv_lshlrev_b32 v19, 6, v19')
        a('v_lshlrev_b32 v21, 3, v21\nv_lshlrev_b32 v20, 7, v20\nv_add_u32 v20, 16384, v20')
        a('v_xor_b32 v12, v21, v19\nv_xor_b32 v13, 64, v12\nv_add_u32 v12, v12, v20\nv_add_u32 v13, v13, v20')
        a('v_lshrrev_b32 v19, 2, v1\nv_and_b32 v20, 3, v1\nv_mul_u32_u24 v14, 2688, v19\nv_lshl_add_u32 v14, v20, 4, v14')
        a('v_and_b32 v19, 0x13, v17\nv_bfe_u32 v20, v17, 2, 1\nv_lshl_or_b32 v19, v20, 3, v19')
        a('v_bfe_u32 v20, v17, 3, 1\nv_lshl_or_b32 v19, v20, 2, v19')
        a('v_lshlrev_b32 v19, 4, v19\nv_lshl_add_u32 v19, v18, 9, v19')
        a('v_mul_u32_u24 v20, 7168, v18\nv_lshl_add_u32 v20, v17, 4, v20')
        a('v_cndmask_b32 v16, v19, v20, vcc')
        a(f's_cmp_eq_u32 {sV}, 1\ns_cbranch_scc1 L_B1_V')

        def b1(isV):
            for p in range(7):
                a(f's_waitcnt vmcnt({12 if p == 0 else (6 if p < 6 else 0)})')
                a('s_barrier')
                if p == 0: self.stamp(2)
                for ss in range(4):
                    a(f'ds_read_b128 {v(X(p,ss),4)}, v{8+ss} offset:{slot(p)}')
                    for n in range(2):
                        for b in range(2):
                            a(f'ds_read_b64_tr_b16 {v(WF(ss,n)+2*b,2)}, v{12+n} offset:{slot(p)+ss*2048+b*512}')
                D = dma(p + 2) if 1 <= p <= 4 else []
                k = 0
                for ss in range(4):
                    a(f's_waitcnt lgkmcnt({15-5*ss})')
                    for n in range(2):
                        c = '0' if (p == 0 and ss == 0) else v(ACC[n], 16)
                        A_, B_ = (X(p, ss), WF(ss, n)) if isV else (WF(ss, n), X(p, ss))
                        a(f'v_mfma_f32_32x32x16_bf16 {v(ACC[n],16)}, {v(A_,4)}, {v(B_,4)}, {c}')
                        if k < len(D) and (ss, n) != (0, 0):
                            a(D[k]); k += 1
                assert k == len(D)
            a(f's_lshl_b32 {t0}, {sT}, 2\ns_add_u32 {t0}, {t0}, {sW}\ns_mul_i32 {t0}, {t0}, {KT_STRIDE}')
            if isV:
                a(f's_lshl_b32 {t1}, {sJ}, 10\ns_add_u32 {t0}, {t0}, {t1}\ns_add_u32 {t0}, {t0}, {VWS}')
                a(f's_add_u32 {t1}, {t0}, 14336')
            else:
                a(f's_lshl_b32 {t1}, {sJ}, 12\ns_add_u32 {t0}, {t0}, {t1}\ns_add_u32 {t0}, {t0}, {KWS}')
            self.stamp(3)
            a(f's_cmp_eq_u32 {sJ}, 7\ns_cbranch_scc1 L_B1_done')
            for n in range(2):
                for kk in range(2):
                    r = PK + 8 * n + 4 * kk
                    for e in range(4):
                        src = ACC[n] + 8 * kk + 2 * e
                        a(f'v_cvt_pk_bf16_f32 v{r+e}, v{src}, v{src+1}')
                    if isV:
                        a(f'buffer_store_dwordx4 {v(r,4)}, v16, {SWS}, {t1 if kk else t0} offen offset:{512*n} sc1')
                    else:
                        a(f'buffer_store_dwordx4 {v(r,4)}, v16, {SWS}, {t0} offen offset:{2048*n+1024*kk} sc1')
        b1(False)
        a('s_branch L_B1_done')
        a('L_B1_V:')
        b1(True)
        a('L_B1_done:')
        a(f's_and_b32 {t0}, s2, 63\ns_lshl_b32 {t0}, {t0}, 7\ns_lshr_b32 {t1}, s2, 6\ns_lshl_b32 {t1}, {t1}, 15')
        a(f's_add_u32 {t0}, {t0}, {t1}\ns_add_u32 {t3}, {t0}, {ONES}')
        a('v_mov_b32 v20, 0x3f803f80\nv_mov_b32 v21, 0x3f803f80\nv_mov_b32 v22, 0x3f803f80\nv_mov_b32 v23, 0x3f803f80')
        a('v_mul_u32_u24 v19, 14336, v1')
        a('s_mov_b64 exec, 3')
        a(f'buffer_store_dwordx4 v[20:23], v19, {SWS}, {t3} offen')
        a('s_mov_b64 exec, -1')
        a(f's_lshl_b32 {t0}, {sW}, 10')
        for p in range(7):
            a(f's_add_u32 m0, {t0}, {WQ+4096*p}\ns_add_u32 {sw[p]}, {sw[p]}, {sDq}')
            a(f'buffer_load_dwordx4 v14, {SW}, {sw[p]} offen lds')
        a('s_waitcnt lgkmcnt(0)')
        a(f's_add_u32 {sTag}, {sTag}, 0x9e3779b9')
        a(f's_lshl_b32 {t0}, {sT}, 4\ns_add_u32 {t0}, {t0}, {sH}\ns_lshl_b32 {sM2}, {t0}, 7')
        a(f's_add_u32 {t0}, {sM2}, {FKV}')
        a('s_waitcnt vmcnt(7)')
        a('s_barrier')
        self.stamp(4)
        self.flag_store(sW, t0, SWS, sTag, 'v19', 'v20')
        a(f's_lshl_b32 {t0}, {sK}, 5')
        a(f'v_lshl_add_u32 v2, v1, 4, {t0}')
        a(f's_mul_i32 {t1}, {sW}, {16*KT_STRIDE}\ns_add_u32 {sK}, {t1}, {KWS}')
        a(f's_mul_i32 {t0}, {sH}, 448\ns_add_u32 {t0}, {t0}, {t1}\ns_add_u32 {t0}, {t0}, {VWS}')
        a('v_mul_u32_u24 v3, 7168, v18\nv_lshl_add_u32 v3, v17, 4, v3')
        a(f'v_add_u32 v3, {t0}, v3\nv_mov_b32 v19, {t3}\nv_mov_b32 v4, {KT_STRIDE}')
        a('v_cmp_gt_u32 vcc, 28, v17')
        a('v_cndmask_b32 v3, v19, v3, vcc\nv_cndmask_b32 v4, 0, v4, vcc')
        a(f'v_mov_b32 v5, 0xdddddddd\ns_mov_b32 {sC14}, 14336')
        a(f's_mul_i32 {t0}, {sH}, 28\ns_lshr_b32 {t1}, {t0}, 6\ns_add_u32 {t0}, {t0}, 27\ns_lshr_b32 {t0}, {t0}, 6')
        a(f's_sub_u32 {t0}, {t0}, {t1}\ns_lshl_b32 {t2}, {sW}, 6\ns_add_u32 {t1}, {t1}, {t2}')
        a(f'v_and_b32 v19, {t0}, v1\nv_and_b32 v20, 14, v1\nv_lshl_add_u32 v19, v20, 2, v19')
        a(f'v_add_u32 v19, {t1}, v19\nv_lshlrev_b32 v19, 7, v19\nv_add_u32 v6, {FKV}, v19')
        cq = f2u(28 ** -0.5 * math.log2(math.e))
        a(f's_and_b32 {t0}, {sH}, 1\nv_mov_b32 v8, {hx(cq)}')
        a(f'v_cmp_gt_u32 vcc, {t0}, v18\nv_cndmask_b32 v9, v8, 0, vcc')
        a(f'v_cmp_lt_u32 vcc, {t0}, v18\nv_cndmask_b32 v10, v8, 0, vcc')
        a(f's_lshl_b32 {t0}, {sW}, 11\nv_lshl_add_u32 v11, v1, 4, {t0}')
        a('v_lshlrev_b32 v12, 4, v1')
        a('s_waitcnt vmcnt(0)')
        a('s_barrier')
        self.stamp(5)
        AQ, QPK = 216, 232
        WR = lambda k: 136 + 4 * (k % 8)

        def rdq(k):
            p, ss = divmod(k, 4)
            for b in range(2):
                a(f'ds_read_b64_tr_b16 {v(WR(k)+2*b,2)}, v15 offset:{p*4096+ss*1024+b*256}')
        for k in range(6): rdq(k)
        for k in range(28):
            left = min(27, k + 5) - k
            a(f's_waitcnt lgkmcnt({2*left})')
            c = '0' if k == 0 else v(AQ, 16)
            a(f'v_mfma_f32_32x32x16_bf16 {v(AQ,16)}, {v(WR(k),4)}, {v(X(k//4,k%4),4)}, {c}')
            if k + 6 < 28: rdq(k + 6)
        a('s_mov_b64 exec, 0xffff')
        a(f'buffer_load_dword v7, v6, {SWS}, 0 offen sc1')
        a('s_mov_b64 exec, -1')
        O = lambda i: 24 + 16 * i
        for i in range(4):
            for e in range(0, 16, 2):
                a(f'v_pk_mul_f32 {v(O(i)+e,2)}, 0, 0')
        for e in range(16):
            a(f'v_mul_f32 v{AQ+e}, v{9 if e < 4 else (10 if e >= 12 else 8)}, v{AQ+e}')
        for e in range(8):
            a(f'v_cvt_pk_bf16_f32 v{QPK+e}, v{AQ+2*e}, v{AQ+2*e+1}')
        a(f'ds_write_b128 v11, {v(QPK,4)} offset:{QX}\nds_write_b128 v11, {v(QPK+4,4)} offset:{QX+1024}')
        self.stamp(6)
        self.poll('v7', 'v6', SWS, sTag, sCnt, '0xffff', first_issued=True)
        self.stamp(7)
        KV = lambda b, j: 168 + 16 * b + 4 * j
        Q = lambda i, kk: 88 + 8 * i + 4 * kk
        S = lambda b: 120 + 16 * b

        def kvload(kt):
            b = kt % 3
            return [f'buffer_load_dwordx4 {v(KV(b,0),4)}, v2, {SWS}, {sK} offen sc1',
                    f'buffer_load_dwordx4 {v(KV(b,1),4)}, v2, {SWS}, {sK} offen offset:1024 sc1\ns_add_u32 {sK}, {sK}, {KT_STRIDE}',
                    f'buffer_load_dwordx4 {v(KV(b,2),4)}, v3, {SWS}, 0 offen sc1',
                    f'buffer_load_dwordx4 {v(KV(b,3),4)}, v3, {SWS}, {sC14} offen sc1\nv_add_u32 v3, v4, v3']
        for kt in range(3):
            for x in kvload(kt): a(x)
        a('s_waitcnt lgkmcnt(0)')
        a('s_barrier')
        for i in range(4):
            a(f's_add_u32 {t0}, {sW}, {1+i}\ns_and_b32 {t0}, {t0}, 3')
            a(f's_lshl_b32 {t1}, {t0}, 11\nv_add_u32 v13, {t1}, v12')
            a(f'ds_read_b128 {v(Q(i,0),4)}, v13 offset:{QX}\nds_read_b128 {v(Q(i,1),4)}, v13 offset:{QX+1024}')
            if i < 3:
                a(f's_mul_i32 {t1}, {t0}, 12288\nv_add_u32 v{8+i}, {t1}, v12')
        a(f's_mul_i32 {t1}, {sW}, 12288\nv_add_u32 v11, {t1}, v12')
        a('s_waitcnt vmcnt(8) lgkmcnt(0)')
        self.stamp(8)

        def qk(n, half):
            kt, i = divmod(n, 4)
            c = '0' if half == 0 else v(S(n % 3), 16)
            return f'v_mfma_f32_32x32x16_bf16 {v(S(n%3),16)}, {v(KV(kt%3,half),4)}, {v(Q(i,half),4)}, {c}'

        def pv(n, half):
            kt, i = divmod(n, 4)
            return f'v_smfmac_f32_32x32x32_bf16 {v(O(i),16)}, {v(KV(kt%3,2+half),4)}, {v(S(n%3)+8*half,8)}, v5'

        def redw(i, q):
            return f'ds_write_b128 v{8+i}, {v(O(i)+4*q,4)} offset:{RED+i*4096+q*1024}'
        a(qk(0, 0)); a(qk(0, 1))
        for n in range(64):
            kt, i = divmod(n, 4)
            extra = [[], [], [], []]
            if i == 1 and kt >= 1 and kt + 2 < 16:
                for q, x in enumerate(kvload(kt + 2)): extra[q].append(x)
            if n == 63:
                for q in range(4): extra[q // 2].append(redw(0, q))
                for q in range(4): extra[2 + q // 2].append(redw(1, q))
            if i == 3 and kt + 1 < 16:
                a(f's_waitcnt vmcnt({4 if kt + 2 < 16 else 0})')
            M = [qk(n + 1, 0) if n < 63 else None, qk(n + 1, 1) if n < 63 else None,
                 pv(n - 1, 0) if n > 0 else None, pv(n - 1, 1) if n > 0 else None]
            if n == 63: M = [M[2], M[3], None, pv(63, 0)]
            for q in range(4):
                if M[q]: a(M[q])
                for e in range(4):
                    r = S(n % 3) + 4 * q + e
                    a(f'v_exp_f32 v{r}, v{r}')
                    if e == 1:
                        for x in extra[q]: a(x)
        a(pv(63, 1))
        self.stamp(9)
        for q in range(4): a(redw(2, q))
        a('s_waitcnt lgkmcnt(0)')
        a('s_barrier')
        OO = O(3)
        for i in range(3):
            for q in range(4):
                a(f'ds_read_b128 {v(O(i)+4*q,4)}, v11 offset:{RED+i*4096+q*1024}')
        for i in range(3):
            a(f's_waitcnt lgkmcnt({8-4*i})')
            for e in range(0, 16, 2):
                a(f'v_pk_add_f32 {v(OO+e,2)}, {v(OO+e,2)}, {v(O(i)+e,2)}')
        a(f'v_mov_b32 v6, v{OO+12}\nv_mov_b32 v7, v{OO+12}')
        a(f'v_pk_add_f32 v[24:25], {v(OO,2)}, {v(OO+2,2)}')
        a('v_permlane32_swap_b32 v6, v7')
        for e in range(4, 16, 2):
            a(f'v_pk_add_f32 v[24:25], v[24:25], {v(OO+e,2)}')
        a(f's_mov_b32 {t0}, {hx(f2u(2.0**-24))}\ns_mov_b32 {t1}, {hx(f2u(2.0**40))}')
        a('v_add_f32 v24, v24, v25\nv_mov_b32 v25, 0x1f8')
        a(f'v_cmp_le_f32 s[66:67], {t0}, v7')
        a(f'v_cmp_ge_f32 vcc, {t1}, v7')
        a('s_and_b64 s[66:67], s[66:67], vcc')
        a('v_cmp_class_f32 vcc, v24, v25')
        a('s_and_b64 s[66:67], s[66:67], vcc')
        a('s_cmp_eq_u64 s[66:67], -1')
        a('s_cbranch_scc0 L_slow' if not o['force_slow'] else 's_branch L_slow')
        a('L_norm:')
        a('v_rcp_f32 v7, v7')
        a('v_cmp_gt_u32 vcc, 32, v1')
        a(f's_lshl_b32 {t0}, {sT}, 2\ns_add_u32 {t0}, {t0}, {sW}\ns_lshl_b32 {t0}, {t0}, 4\ns_add_u32 {t0}, {t0}, {sH}')
        a(f's_lshl_b32 {t0}, {t0}, 11\ns_add_u32 {t0}, {t0}, {OWS}')
        a('v_cndmask_b32 v6, 0, v7, vcc')
        for kk in range(2):
            for e in range(8):
                r = OO + 8 * kk + e
                a(f'v_mul_f32 v{r}, v{6 if (kk == 1 and e >= 4) else 7}, v{r}')
            for e in range(4):
                a(f'v_cvt_pk_bf16_f32 v{24+4*kk+e}, v{OO+8*kk+2*e}, v{OO+8*kk+2*e+1}')
            a(f'buffer_store_dwordx4 {v(24+4*kk,4)}, v12, {SWS}, {t0} offen offset:{1024*kk} sc1')
        self.stamp(10)
        a(f's_cmp_eq_u32 {sJ}, 7\ns_cbranch_scc1 L_nojob')
        a('s_barrier')
        a('v_lshrrev_b32 v17, 3, v1\nv_and_b32 v18, 7, v1\nv_bfe_u32 v19, v1, 4, 1')
        a('v_lshlrev_b32 v19, 2, v19\nv_xor_b32 v18, v18, v19\nv_lshlrev_b32 v18, 4, v18')
        a('v_mul_u32_u24 v2, 896, v17\nv_add_u32 v2, v2, v18')
        a(f's_lshl_b32 {t1}, {sJ}, 7\ns_mul_i32 {t2}, {sW}, 7168\ns_add_u32 {t1}, {t1}, {t2}\ns_lshl_b32 {t2}, {sW}, 10')
        for k in range(15):
            a(f's_add_u32 m0, {t2}, {4096*k}')
            if k: a(f's_add_u32 {t1}, {t1}, 28672')
            a(f'buffer_load_dwordx4 v2, {SWO}, {t1} offen lds')
        a(f's_add_u32 {t0}, {sM2}, {FO}')
        a('s_waitcnt vmcnt(15)')
        a('s_barrier')
        self.flag_store(sW, t0, SWS, sTag, 'v19', 'v20')
        self.stamp(11)
        a('v_lshrrev_b32 v18, 5, v1\nv_bfe_u32 v19, v1, 2, 2\nv_lshl_add_u32 v20, v18, 2, v19')
        a('v_and_b32 v21, 1, v1\nv_bfe_u32 v22, v1, 1, 1\nv_lshl_add_u32 v21, v21, 2, v22')
        a('v_bfe_u32 v22, v1, 4, 1\nv_lshl_add_u32 v21, v22, 1, v21\nv_lshlrev_b32 v21, 3, v21')
        a(f's_and_b32 {t1}, {sW}, 1\nv_lshrrev_b32 v19, 1, v19\nv_xor_b32 v19, {t1}, v19')
        a('v_lshl_add_u32 v21, v19, 6, v21\nv_lshl_add_u32 v3, v20, 7, v21')
        a(f's_lshl_b32 {t1}, {sT}, 11\ns_add_u32 {t1}, {t1}, {FO}\nv_lshl_add_u32 v6, v1, 7, {t1}')
        a(f's_lshr_b32 {t1}, {sW}, 1\ns_lshl_b32 {t1}, {t1}, 13\nv_add_u32 v4, {t1}, v12')
        a('s_waitcnt vmcnt(0)')
        a('s_barrier')
        WOF = lambda k: 24 + 4 * k
        for k in range(32):
            hh, kk = divmod(k, 2)
            for b in range(2):
                a(f'ds_read_b64_tr_b16 {v(WOF(k)+2*b,2)}, v3 offset:{(28*hh+16*kk+8*b)*128}')
        a(f's_lshl_b32 {t0}, {sT}, 2\ns_lshl_b32 {t1}, {sV}, 1\ns_add_u32 {t0}, {t0}, {t1}')
        a(f's_lshr_b32 {t1}, {sW}, 1\ns_add_u32 {t3}, {t0}, {t1}\ns_lshl_b32 {t0}, {t3}, 15')
        a(f's_and_b32 {t1}, {sW}, 1\ns_lshl_b32 {t1}, {t1}, 12\ns_add_u32 {t0}, {t0}, {t1}\ns_add_u32 {t0}, {t0}, {OWS}')
        self.poll('v7', 'v6', SWS, sTag, sCnt, '0xffff')
        a('s_waitcnt lgkmcnt(0)')
        a('s_barrier')
        self.stamp(12)
        for y in range(4):
            a(f's_add_u32 m0, {sM4}, {16384*y}')
            if y: a(f's_add_u32 {t0}, {t0}, 8192')
            for q in range(4):
                a(f'buffer_load_dwordx4 v12, {SWS}, {t0} offen offset:{1024*q} sc1 lds')
        TR = 65536
        a(f's_mul_i32 {t1}, {sW}, 2560\ns_add_u32 {t1}, {t1}, {TR}')
        a(f'v_and_b32 v17, 31, v1\nv_mul_u32_u24 v8, 80, v17\nv_lshl_add_u32 v8, v18, 5, v8\nv_add_u32 v8, {t1}, v8')
        a(f'v_lshrrev_b32 v17, 2, v1\nv_and_b32 v19, 3, v1\nv_mul_u32_u24 v9, 80, v17\nv_lshl_add_u32 v9, v19, 4, v9\nv_add_u32 v9, {t1}, v9')
        a('v_mul_u32_u24 v10, 1792, v17\nv_lshl_add_u32 v10, v19, 4, v10')
        a(f's_mul_i32 {t2}, {t3}, {32*1792}\ns_lshl_b32 {t1}, {sJ}, 7\ns_add_u32 {t2}, {t2}, {t1}')
        a(f's_and_b32 {t1}, {sW}, 1\ns_lshl_b32 {t1}, {t1}, 6\ns_add_u32 {t2}, {t2}, {t1}\ns_add_u32 {t2}, {t2}, 896')
        a(f's_add_u32 {t1}, {t2}, {16*1792}')
        OF = lambda k: 152 + 4 * (k % 16)
        AO = 216
        for y in range(4):
            a(f's_waitcnt vmcnt({12-4*y})')
            a('s_barrier')
            for k in range(8):
                a(f'ds_read_b128 {v(OF(8*y+k),4)}, v4 offset:{16384*y+1024*k}')
            for k in range(8):
                a(f's_waitcnt lgkmcnt({7-k})')
                c = '0' if (y == 0 and k == 0) else v(AO, 16)
                a(f'v_mfma_f32_32x32x16_bf16 {v(AO,16)}, {v(WOF(8*y+k),4)}, {v(OF(8*y+k),4)}, {c}')
        self.stamp(13)
        for e in range(8):
            a(f'v_cvt_pk_bf16_f32 v{232+e}, v{AO+2*e}, v{AO+2*e+1}')
        a('ds_write_b128 v8, v[232:235]\nds_write_b128 v8, v[236:239] offset:16')
        a('ds_read_b128 v[240:243], v9\nds_read_b128 v[244:247], v9 offset:1280')
        a('s_waitcnt lgkmcnt(1)')
        a(f'buffer_store_dwordx4 v[240:243], v10, {SOUT}, {t2} offen')
        a('s_waitcnt lgkmcnt(0)')
        a(f'buffer_store_dwordx4 v[244:247], v10, {SOUT}, {t1} offen')
        self.stamp(14)
        self.dump_stamps(SWS, sW)
        a('s_endpgm')

        a('L_nojob:')
        a(f's_add_u32 {t0}, {sM2}, {FO}')
        a('s_waitcnt vmcnt(0)')
        a('s_barrier')
        self.flag_store(sW, t0, SWS, sTag, 'v19', 'v20')
        a('s_cmp_lg_u32 s2, 255\ns_cbranch_scc1 L_nojob_end')
        a(f'v_lshlrev_b32 v6, 7, v0\nv_add_u32 v6, {FO}, v6')
        self.poll('v7', 'v6', SWS, sTag, sCnt, '-1', sleep=16)
        a(f'v_min_u32 v6, 223, v0\nv_lshlrev_b32 v6, 7, v6\nv_add_u32 v6, {FU}, v6')
        self.poll('v7', 'v6', SWS, sTag, sCnt, '-1', sleep=16)
        a('s_barrier')
        a(f's_mov_b32 {t0}, {EPOCH}')
        self.flag_store(sW, t0, SWS, sTag, 'v19', 'v20')
        a('L_nojob_end:')
        self.dump_stamps(SWS, sW)
        a('s_endpgm')

        a('L_slow:')
        a('v_mov_b32 v6, 0xff800000')
        a(f's_mov_b32 {sK}, {KWS}\ns_mov_b32 {sCnt}, 64')
        a('L_slow1:')
        a(f'buffer_load_dwordx4 {v(KV(0,0),4)}, v2, {SWS}, {sK} offen sc1')
        a(f'buffer_load_dwordx4 {v(KV(0,1),4)}, v2, {SWS}, {sK} offen offset:1024 sc1')
        a(f's_add_u32 {sK}, {sK}, {KT_STRIDE}')
        a('s_waitcnt vmcnt(0)')
        a(qk(3, 0)); a(qk(3, 1))
        for e in range(0, 16, 2):
            a(f'v_max3_f32 v6, v6, v{S(0)+e}, v{S(0)+e+1}')
        a(f's_sub_u32 {sCnt}, {sCnt}, 1\ns_cmp_lg_u32 {sCnt}, 0\ns_cbranch_scc1 L_slow1')
        a('v_mov_b32 v7, v6\ns_nop 1\nv_permlane32_swap_b32 v6, v7\ns_nop 1\nv_max_f32 v6, v6, v7')
        a(f's_add_u32 {t0}, {sW}, 1\ns_lshl_b32 {t0}, {t0}, 4\nv_mul_lo_u32 v7, v4, {t0}\nv_sub_u32 v3, v3, v7')
        for e in range(16): a(f'v_mov_b32 v{OO+e}, 0')
        a(f's_mov_b32 {sK}, {KWS}\ns_mov_b32 {sCnt}, 64')
        a('L_slow2:')
        for x in kvload(0): a(x)
        a('s_waitcnt vmcnt(0)')
        a(qk(3, 0)); a(qk(3, 1))
        for e in range(16): a(f'v_sub_f32 v{S(0)+e}, v{S(0)+e}, v6')
        for e in range(16): a(f'v_exp_f32 v{S(0)+e}, v{S(0)+e}')
        a(pv(3, 0)); a(pv(3, 1))
        a('s_nop 15')
        a(f's_sub_u32 {sCnt}, {sCnt}, 1\ns_cmp_lg_u32 {sCnt}, 0\ns_cbranch_scc1 L_slow2')
        a(f'v_mov_b32 v6, v{OO+12}\nv_mov_b32 v7, v{OO+12}\ns_nop 1\nv_permlane32_swap_b32 v6, v7\ns_nop 1')
        a('s_branch L_norm')

    def role_A(self):
        a = self.a; o = self.o
        SU, SWS, SOUT = 's[24:27]', 's[28:31]', 's[32:35]'
        sW, sG, sR, sP, sTag, sCnt, sLdt, sDsk, sCh, sHalf = ['s%d' % i for i in range(36, 46)]
        t0, t1, t2, t3 = 's46', 's47', 's48', 's49'
        sFl = 's50'
        KC, UTL, TILE, XCH = 0, 36864, 52224, 60416
        UTS = 7584
        a('L_roleA:')
        a(f's_and_b32 {sG}, s2, 7\ns_cmp_eq_u32 {sG}, 7\ns_cbranch_scc1 L_exit')
        a('s_load_dwordx16 s[4:19], s[0:1], 0')
        a('s_load_dwordx2 s[20:21], s[0:1], 80')
        a('s_load_dwordx2 s[22:23], s[0:1], 96')
        self.stamp(0)
        a(f's_setprio {o["prioA"]}')
        a('v_lshrrev_b32 v2, 6, v0\nv_and_b32 v1, 63, v0')
        a(f'v_readfirstlane_b32 {sW}, v2')
        a(f's_lshr_b32 {sR}, s2, 3\ns_and_b32 {sR}, {sR}, 31')
        a(f's_lshl_b32 {sP}, {sG}, 5\ns_add_u32 {sP}, {sP}, {sR}\ns_lshl_b32 {sFl}, {sP}, 7')
        a(f's_lshr_b32 {sCh}, {sW}, 1\ns_and_b32 {sHalf}, {sW}, 1')
        a(f's_lshl_b32 {t0}, {sP}, 10\nv_lshl_add_u32 v2, v0, 2, {t0}')
        a('v_lshrrev_b32 v5, 3, v1\nv_and_b32 v6, 7, v1\nv_lshrrev_b32 v7, 5, v1')
        a(f's_lshl_b32 {t0}, {sHalf}, 2\nv_or_b32 v7, {t0}, v7\nv_xor_b32 v7, v6, v7\nv_lshlrev_b32 v7, 4, v7')
        a('v_mul_u32_u24 v3, 896, v5\nv_xor_b32 v8, 32, v7')
        a(f'v_add_u32 v4, {7168-1024}, v3\nv_add_u32 v4, v4, v8\nv_add_u32 v3, v3, v7')
        a(f's_lshl_b32 {t0}, {sR}, 2\ns_add_u32 {t0}, {t0}, {sW}\ns_mul_i32 {t0}, {t0}, {16*896}')
        a(f's_lshl_b32 {t1}, {sG}, 7\ns_add_u32 {t0}, {t0}, {t1}')
        a(f's_lshl_b32 {t1}, {sW}, 11\ns_lshl_b32 {t2}, {sP}, 2')
        a('s_waitcnt lgkmcnt(0)')
        a(f's_load_dword {sTag}, s[22:23], {EPOCH}')
        a(f's_load_dword {sLdt}, s[14:15], {t2}')
        a(f's_load_dword {sDsk}, s[16:17], {t2}')
        self.srd(24, 4, 2048 * 896)
        a(f's_add_u32 m0, {t1}, {TILE}')
        a(f'buffer_load_dwordx4 v3, {SU}, {t0} offen lds')
        a(f'buffer_load_dwordx4 v4, {SU}, {t0} offen offset:1024 lds')
        for k in range(4):
            a(f'global_load_dword v{12+k}, v2, s[{6+2*k}:{7+2*k}]')
        self.srd(28, 22, WS_SIZE)
        self.srd(32, 20, 2048 * 1792)
        for e in range(4): a(f'v_mov_b32 v{16+e}, 0')
        a(f'v_and_b32 v8, 127, v0\nv_min_u32 v8, 89, v8\nv_lshlrev_b32 v8, 4, v8')
        a(f's_mul_i32 {t0}, {sCh}, {UTS}\nv_add_u32 v8, {t0}, v8')
        a(f'ds_write_b128 v8, v[16:19] offset:{UTL}')
        a(f's_lshl_b32 {t0}, {sW}, 1\nv_lshrrev_b32 v7, 5, v1\nv_add_u32 v7, {t0}, v7')
        a('v_xor_b32 v7, v7, v6\nv_lshlrev_b32 v7, 4, v7\nv_lshl_add_u32 v7, v6, 9, v7')
        a('v_and_b32 v8, 3, v5\nv_lshl_add_u32 v9, v8, 2, v7')
        a('v_lshlrev_b32 v10, 13, v5\nv_lshl_add_u32 v10, v6, 4, v10')
        a(f's_lshl_b32 {t0}, {sG}, 2\ns_add_u32 {t0}, {t0}, {sW}\ns_lshl_b32 {t0}, {t0}, 16')
        a(f's_lshl_b32 {t1}, {sR}, 8\ns_add_u32 {t3}, {t0}, {t1}\ns_add_u32 {t0}, {t3}, {UT}')
        a('s_waitcnt vmcnt(4)')
        a('s_barrier')
        self.stamp(1)
        for hq in range(2):
            for e in range(4):
                a(f'ds_read_b32 v{20+4*hq+e}, v9 offset:{TILE+hq*4096+e*128}')
        a('s_waitcnt lgkmcnt(0)')
        a(f'buffer_store_dwordx4 v[20:23], v10, {SWS}, {t0} offen sc1')
        a(f'buffer_store_dwordx4 v[24:27], v10, {SWS}, {t0} offen offset:128 sc1')
        a(f's_add_u32 {sTag}, {sTag}, 0x9e3779b9')
        L2E = math.log2(math.e)
        l2e_hi = struct.unpack('<f', struct.pack('<f', L2E))[0]
        cL, cLlo, cLn2, cRev, c8, c256 = 's52', 's53', 's54', 's55', 's[56:57]', 's[58:59]'
        a(f's_mov_b32 {cL}, {hx(f2u(l2e_hi))}\ns_mov_b32 {cLlo}, {hx(f2u(L2E-l2e_hi))}\ns_mov_b32 {cLn2}, {hx(f2u(math.log(2)))}')
        a(f's_mov_b32 {cRev}, {hx(f2u(1/(2*math.pi)))}')
        a(f's_mov_b32 s56, {hx(f2u(8.0))}\ns_mov_b32 s57, s56\ns_mov_b32 s58, {hx(f2u(256.0))}\ns_mov_b32 s59, s58')

        def exp_bf16(d, x, ta, tb):
            a(f'v_mul_f32 {ta}, {cL}, {x}')
            a(f'v_fma_f32 {tb}, {x}, {cL}, -{ta}')
            a(f'v_exp_f32 {ta}, {ta}')
            a(f'v_fma_f32 {tb}, {x}, {cLlo}, {tb}')
            a(f'v_mul_f32 {tb}, {cLn2}, {tb}')
            a(f'v_fma_f32 {ta}, {ta}, {tb}, {ta}')
            a(f'v_cvt_pk_bf16_f32 {ta}, {ta}, {ta}')
            a(f'v_lshlrev_b32 {d}, 16, {ta}')
        a(f's_lshl_b32 {t1}, {sCh}, 4\ns_lshr_b32 {sLdt}, {sLdt}, {t1}\ns_lshl_b32 {sLdt}, {sLdt}, 16')
        a(f's_lshr_b32 {sDsk}, {sDsk}, {t1}\ns_lshl_b32 {sDsk}, {sDsk}, 16')
        a(f'v_mov_b32 v28, {sLdt}')
        exp_bf16('v11', 'v28', 'v29', 'v30')
        a(f's_mul_i32 {t0}, {sW}, 9216\nv_mul_u32_u24 v3, 144, v1\nv_add_u32 v3, {t0}, v3')
        a('v_lshrrev_b32 v28, 5, v1\nv_mul_u32_u24 v28, 576, v28')
        a('v_bfe_u32 v29, v1, 3, 1\nv_mul_u32_u24 v29, 1152, v29\nv_bfe_u32 v30, v1, 2, 1\nv_lshl_add_u32 v29, v30, 6, v29')
        a(f'v_add3_u32 v28, v28, v29, {t0}')
        a('v_and_b32 v29, 3, v1\nv_bfe_u32 v30, v1, 4, 1\nv_lshl_add_u32 v29, v30, 2, v29')
        a('v_lshl_add_u32 v4, v29, 3, v28')
        a('v_and_b32 v30, 1, v29\nv_lshrrev_b32 v29, 1, v29\nv_lshl_add_u32 v29, v30, 2, v29')
        a('v_lshl_add_u32 v5, v29, 3, v28')
        AK = 32
        for e in range(16): a(f'v_mov_b32 v{AK+e}, 0')
        LOF = lambda k: 48 + 4 * k
        HIF = lambda k: 80 + 4 * k
        PKR = [112, 120]
        Wv = lambda i: 128 + 2 * (i % 8)
        Hv = lambda i: 144 + 2 * i
        ZA, ZT, Z1, Z8, ZY = 200, 202, 204, 206, 208

        def cmul(d, x, y):
            a(f'v_pk_mul_f32 {v(d,2)}, {v(x,2)}, {v(y,2)} op_sel:[0,0] op_sel_hi:[0,1]')
            a(f'v_pk_fma_f32 {v(d,2)}, {v(x,2)}, {v(y,2)}, {v(d,2)} op_sel:[1,1,0] op_sel_hi:[1,0,1] neg_lo:[1,0,0]')

        def cexp(d, x):
            a(f'v_fract_f32 v{d+1}, v{x+1}')
            a(f'v_exp_f32 v210, v{x}')
            a(f'v_cos_f32 v{d}, v{d+1}')
            a(f'v_sin_f32 v{d+1}, v{d+1}')
            a(f'v_pk_mul_f32 {v(d,2)}, {v(d,2)}, v[210:211] op_sel_hi:[1,0]')
        self._pk = 0

        def put(vals, grp, neg):
            r = PKR[self._pk]; self._pk ^= 1
            m = '-' if neg else ''
            for e in range(4):
                a(f'v_cvt_pk_bf16_f32 v{r+e}, v{vals[2*e]}, v{vals[2*e+1]}')
            a(f'ds_write_b128 v3, {v(r,4)} offset:{16*grp}')
            for e in range(4):
                a(f'v_cvt_pk_bf16_f32 v{r+4+e}, {m}v{vals[2*e]+1}, {m}v{vals[2*e+1]+1}')
            a(f'ds_write_b128 v3, {v(r+4,4)} offset:{64+16*grp}')

        def trread(F, addr):
            for ks in range(8):
                for b in range(2):
                    a(f'ds_read_b64_tr_b16 {v(F(ks)+2*b,2)}, {addr} offset:{b*288+(ks&1)*144+(ks>>1)*2304}')
        a(f's_mov_b32 {sCnt}, 0')
        a('s_waitcnt vmcnt(2)')
        self.stamp(2)
        a('L_kgen:')
        for k in range(4): a(f'v_lshlrev_b32 v{16+k}, 16, v{12+k}')
        for k in range(4): a(f'v_lshrrev_b32 v{12+k}, 16, v{12+k}')
        exp_bf16('v16', 'v16', 'v29', 'v30')
        a(f'v_mul_f32 v{ZA}, v16, v11\nv_mul_f32 v{ZA+1}, v17, v11')
        a(f'v_mul_f32 v{ZA}, {hx(f2u(-L2E))}, v{ZA}\nv_mul_f32 v{ZA+1}, {cRev}, v{ZA+1}')
        a('v_add_f32 v29, v11, v11')
        a(f'v_mul_f32 v{Hv(0)}, v18, v29\nv_mul_f32 v{Hv(0)+1}, v19, v29')
        a(f'v_pk_mul_f32 {v(ZT,2)}, {v(ZA,2)}, {c8}')
        cexp(Z8, ZT)
        a(f'v_pk_mul_f32 {v(ZT,2)}, {v(ZA,2)}, {c256}')
        cexp(Z1, ZA)
        cexp(ZY, ZT)
        a(f'v_mov_b32 v{Wv(0)}, 1.0\nv_mov_b32 v{Wv(0)+1}, 0\nv_mov_b32 v{Wv(1)}, v{Z8}\nv_mov_b32 v{Wv(1)+1}, v{Z8+1}')
        for i in range(2, 32):
            cmul(Wv(i), Wv(i - 1), Z8)
            if i % 8 == 7: put([Wv(j) for j in range(8)], i // 8, False)
        trread(LOF, 'v4')
        Hn = {}
        nxt = [0]

        def newH(p):
            Hn[p] = Hv(nxt[0]); nxt[0] += 1
            return Hn[p]
        newH(0)
        for p in range(1, 9): cmul(newH(p), Hn[p - 1], Z1)
        put([Hn[p] for p in range(8)], 0, True)
        for p in (0, 2, 4, 6, 8): cmul(newH(256 + p), Hn[p], ZY)
        put([Hn[256 + p] for p in (0, 0, 2, 4, 4, 4, 6, 8)], 2, True)
        for base, offs in ((512, (0, 4, 8)), (768, (0, 4, 8)), (1024, (0, 8)), (1280, (0, 8)), (1536, (0, 8))):
            for p in offs: cmul(newH(base + p), Hn[base - 256 + p], ZY)
        put([Hn[p] for p in (512, 516, 520, 1024, 1032, 1536, 1544, 1544)], 1, True)
        for p in (0, 8): cmul(newH(1792 + p), Hn[1536 + p], ZY)
        put([Hn[p] for p in (768, 772, 776, 1280, 1288, 1792, 1800, 1800)], 3, True)
        trread(HIF, 'v5')
        for ks in range(8):
            a(f's_waitcnt lgkmcnt({14-2*ks})')
            a(f'v_mfma_f32_32x32x16_bf16 {v(AK,16)}, {v(HIF(ks),4)}, {v(LOF(ks),4)}, {v(AK,16)}')
        a(f's_cmp_lg_u32 {sCnt}, 0\ns_cbranch_scc1 L_kgen_done')
        a(f's_mov_b32 {sCnt}, 1')
        a(f's_add_u32 {t0}, {sFl}, {FU}')
        a('s_waitcnt vmcnt(0)')
        a('s_barrier')
        self.flag_store(sW, t0, SWS, sTag, 'v29', 'v30')
        a('s_branch L_kgen')
        a('L_kgen_done:')
        self.stamp(3)
        a(f's_lshl_b32 {t0}, {sG}, 12\ns_add_u32 {t0}, {t0}, {FU}\nv_lshl_add_u32 v6, v1, 7, {t0}')
        self.setexec('lo32')
        a(f'buffer_load_dword v7, v6, {SWS}, 0 offen sc1')
        a('s_mov_b64 exec, -1')
        a(f's_lshl_b32 {t0}, {sW}, 11\nv_lshl_add_u32 v8, v1, 4, {t0}\nv_xor_b32 v9, 2048, v8')
        a(f's_mul_i32 {t0}, {sCh}, 16640\nv_lshl_add_u32 v12, v1, 4, {t0}')
        a(f's_cmp_eq_u32 {sHalf}, 1\ns_cbranch_scc1 L_x1')
        a(f'ds_write_b128 v8, {v(AK+8,4)} offset:{XCH}\nds_write_b128 v8, {v(AK+12,4)} offset:{XCH+1024}')
        a('s_waitcnt lgkmcnt(0)\ns_barrier')
        a(f'ds_read_b128 v[48:51], v9 offset:{XCH}\nds_read_b128 v[52:55], v9 offset:{XCH+1024}')
        for e in range(4): a(f'v_mov_b32 v{16+e}, 0')
        a(f'v_lshrrev_b32 v13, 2, v1\nv_mul_u32_u24 v13, 4160, v13\nv_and_b32 v14, 3, v1\nv_lshl_add_u32 v13, v14, 4, v13\nv_add_u32 v13, {t0}, v13')
        a('s_mov_b64 exec, 0xffff')
        a(f'ds_write_b128 v13, v[16:19] offset:{KC}')
        a('s_mov_b64 exec, 1')
        a(f'v_add_f32 v{AK}, {sDsk}, v{AK}')
        a('s_mov_b64 exec, -1')
        a('s_waitcnt lgkmcnt(1)')
        for e in range(0, 8, 2):
            a(f'v_pk_add_f32 {v(AK+e,2)}, {v(AK+e,2)}, {v(48+e,2)}')
        for e in range(4): a(f'v_cvt_pk_bf16_f32 v{56+e}, v{AK+2*e}, v{AK+2*e+1}')
        a(f'ds_write_b128 v12, v[56:59] offset:{KC+64}')
        a('s_branch L_x2')
        a('L_x1:')
        a('s_nop 7')
        a(f'ds_write_b128 v8, {v(AK,4)} offset:{XCH}\nds_write_b128 v8, {v(AK+4,4)} offset:{XCH+1024}')
        a('s_waitcnt lgkmcnt(0)\ns_barrier')
        a(f'ds_read_b128 v[48:51], v9 offset:{XCH}\nds_read_b128 v[52:55], v9 offset:{XCH+1024}')
        a('v_and_b32 v13, 1, v1\nv_cmp_eq_u32 vcc, 1, v13')
        a('s_waitcnt lgkmcnt(0)')
        B_ = AK + 8
        for e in range(0, 8, 2):
            a(f'v_pk_add_f32 {v(B_+e,2)}, {v(B_+e,2)}, {v(48+e,2)}')
        for e, (x, y) in enumerate(((0, 0), (0, 1), (1, 1), (2, 2))):
            a(f'v_cvt_pk_bf16_f32 v{56+e}, v{B_+x}, v{B_+y}')
        a(f'ds_write_b128 v12, v[56:59] offset:{KC+64+1024}')
        for st in range(2):
            a0, a8 = B_ + 3 + 2 * st, B_ + 4 + 2 * st
            r = 60 + 4 * st
            a(f'v_cndmask_b32 v13, v{a0}, v{a8}, vcc')
            a(f'v_cvt_pk_bf16_f32 v{r}, v{a0}, v{a0}\nv_cvt_pk_bf16_f32 v{r+1}, v{a0}, v{a0}')
            a(f'v_cvt_pk_bf16_f32 v{r+2}, v13, v{a8}\nv_cvt_pk_bf16_f32 v{r+3}, v{a8}, v{a8}')
            a(f'ds_write_b128 v12, {v(r,4)} offset:{KC+64+2048+1024*st}')
        a('L_x2:')
        self.poll('v7', 'v6', SWS, sTag, sCnt, 'lo32', first_issued=True, sleep=8)
        a(f's_lshl_b32 {t1}, {sP}, 13\ns_add_u32 {t1}, {t1}, {UT}\nv_lshlrev_b32 v13, 5, v0')
        a(f'buffer_load_dwordx4 v[20:23], v13, {SWS}, {t1} offen sc1')
        a(f'buffer_load_dwordx4 v[24:27], v13, {SWS}, {t1} offen offset:16 sc1')
        a('s_waitcnt lgkmcnt(0)\ns_barrier')
        self.stamp(4)
        a(f's_lshl_b32 {t1}, {sHalf}, 11\nv_add_u32 v12, {t1}, v12')
        for j in range(2):
            a(f'ds_read_b64 {v(48+8*j,2)}, v12 offset:{KC+64+1024*j-8}')
            a(f'ds_read_b128 {v(50+8*j,4)}, v12 offset:{KC+64+1024*j}')
        for j in range(2):
            E = 48 + 8 * j
            r = 64 + 12 * j
            a(f's_waitcnt lgkmcnt({2 if j == 0 else 3})')
            for e in range(4): a(f'v_alignbit_b32 v{r+e}, v{E+e+2}, v{E+e+1}, 16')
            a(f'ds_write_b128 v12, {v(r,4)} offset:{KC+64+1024*j+4160}')
            for e in range(4): a(f'v_mov_b32 v{r+4+e}, v{E+e+1}')
            a(f'ds_write_b128 v12, {v(r+4,4)} offset:{KC+64+1024*j+2*4160}')
            for e in range(4): a(f'v_alignbit_b32 v{r+8+e}, v{E+e+1}, v{E+e}, 16')
            a(f'ds_write_b128 v12, {v(r+8,4)} offset:{KC+64+1024*j+3*4160}')
        a('v_lshrrev_b32 v13, 2, v0\nv_mul_u32_u24 v13, 96, v13\nv_and_b32 v14, 3, v0\nv_lshl_add_u32 v13, v14, 4, v13')
        a(f's_mov_b32 {t1}, 0x05040100\ns_mov_b32 {t2}, 0x07060302')
        a('s_waitcnt vmcnt(0)')
        for cch in range(2):
            for k in range(4):
                a(f'v_perm_b32 v{88+4*cch+k}, v{20+6-2*k}, v{20+7-2*k}, {t2 if cch else t1}')
            a(f'ds_write_b128 v13, {v(88+4*cch,4)} offset:{UTL+cch*UTS+15*96}')
        a('v_and_b32 v14, 15, v1\nv_lshrrev_b32 v15, 4, v1')
        a('v_lshlrev_b32 v16, 3, v15\nv_sub_u32 v16, v14, v16\nv_add_u32 v16, 25, v16')
        a('v_sub_u32 v17, 0, v16\nv_and_b32 v17, 3, v17\nv_add_u32 v16, v16, v17')
        a('v_mul_u32_u24 v17, 4160, v17\nv_lshl_add_u32 v16, v16, 1, v17')
        a(f's_lshl_b32 {t1}, {sHalf}, 9\ns_add_u32 {t1}, {t1}, {t0}\nv_add_u32 v2, {t1}, v16')
        a(f's_mul_i32 {t1}, {sCh}, {UTS}\ns_mul_i32 {t2}, {sHalf}, 768\ns_sub_u32 {t1}, {t1}, {t2}\ns_add_u32 {t1}, {t1}, {UTL}')
        a(f'v_mul_u32_u24 v3, 96, v14\nv_lshl_add_u32 v3, v15, 4, v3\nv_add_u32 v3, {t1}, v3')
        a(f's_mul_i32 {t1}, {sW}, 9216\nv_mul_u32_u24 v4, 144, v14\nv_lshl_add_u32 v4, v15, 4, v4\nv_add_u32 v4, {t1}, v4')
        a('v_lshrrev_b32 v5, 3, v0\nv_mul_u32_u24 v5, 144, v5\nv_and_b32 v16, 7, v0\nv_lshl_add_u32 v5, v16, 4, v5')
        a('s_waitcnt lgkmcnt(0)\ns_barrier')
        self.stamp(5)
        CA = lambda c, bi: 32 + 8 * c + 4 * bi
        FA = lambda b, q, bi: 64 + 48 * b + 8 * q + 4 * bi
        FB = lambda b, c: 64 + 48 * b + 32 + 4 * c

        def creads(k):
            b = k % 2
            L = []
            for q in range(4):
                L.append(f'ds_read_b128 {v(FB(b,q),4)}, v3 offset:{96*(15+16*q-k)}')
                for bi in range(2):
                    for h in range(2):
                        L.append(f'ds_read_b64 {v(FA(b,q,bi)+2*h,2)}, v2 offset:{KC+64*k+1024*q+32*bi+8*h}')
            return L
        for x in creads(0): a(x)
        for k in range(8):
            R = creads(k + 1) if k < 7 else []
            a('s_waitcnt lgkmcnt(0)')
            n = 0
            for q in range(4):
                for c1 in range(4 - q):
                    for bi in range(2):
                        c = '0' if (k == 0 and q == 0) else v(CA(c1 + q, bi), 4)
                        a(f'v_mfma_f32_16x16x32_bf16 {v(CA(c1+q,bi),4)}, {v(FA(k%2,q,bi),4)}, {v(FB(k%2,c1),4)}, {c}')
                        for x in R[2 * n:2 * n + 2]: a(x)
                        n += 1
        self.stamp(6)
        a('s_barrier')
        for c in range(4):
            for bi in range(2):
                a(f'ds_write_b128 v4, {v(CA(c,bi),4)} offset:{c*2304+bi*64}')
        a(f's_lshl_b32 {t1}, {sP}, 13\ns_add_u32 {t1}, {t1}, {YT}\ns_add_u32 {t2}, {t1}, 4096\nv_lshlrev_b32 v13, 4, v0')
        a('s_waitcnt lgkmcnt(0)\ns_barrier')
        for j in range(2):
            for w4 in range(4):
                a(f'ds_read_b128 {v(64+16*j+4*w4,4)}, v5 offset:{w4*9216+j*4608}')
        for j in range(2):
            r = 64 + 16 * j
            a(f's_waitcnt lgkmcnt({4-4*j})')
            for cch in range(2):
                for e in range(0, 4, 2):
                    a(f'v_pk_add_f32 {v(r+8*cch+e,2)}, {v(r+8*cch+e,2)}, {v(r+8*cch+4+e,2)}')
            for e in range(4): a(f'v_cvt_pk_bf16_f32 v{96+4*j+e}, v{r+e}, v{r+8+e}')
            a(f'buffer_store_dwordx4 {v(96+4*j,4)}, v13, {SWS}, {t2 if j else t1} offen sc1')
        a(f's_add_u32 {t0}, {sFl}, {FY}')
        a(f'v_add_u32 v6, {FY-FU}, v6')
        a('s_waitcnt vmcnt(0)\ns_barrier')
        self.flag_store(sW, t0, SWS, sTag, 'v29', 'v30')
        self.stamp(7)
        a(f's_lshl_b32 {t1}, {sW}, 1\nv_and_b32 v14, 15, v1\nv_xor_b32 v14, {t1}, v14\nv_lshlrev_b32 v14, 4, v14')
        a(f'v_lshl_add_u32 v2, v15, 13, v14\nv_xor_b32 v3, 16, v2\nv_add_u32 v3, {4*8192-1024}, v3')
        a(f's_lshl_b32 {t1}, {sW}, 2\nv_lshrrev_b32 v16, 5, v1\nv_add_u32 v16, {t1}, v16\nv_and_b32 v17, 7, v1')
        a('v_xor_b32 v16, v16, v17\nv_lshlrev_b32 v16, 4, v16\nv_lshl_add_u32 v16, v17, 10, v16')
        a('v_bfe_u32 v18, v1, 3, 2\nv_lshl_add_u32 v4, v18, 2, v16\nv_xor_b32 v5, 32, v4')
        a('v_lshrrev_b32 v18, 3, v1\nv_mul_u32_u24 v8, 1792, v18\nv_lshl_add_u32 v8, v17, 4, v8')
        a(f's_lshl_b32 {t0}, {sR}, 2\ns_add_u32 {t0}, {t0}, {sW}\ns_mul_i32 {t0}, {t0}, {16*1792}')
        a(f's_lshl_b32 {t1}, {sG}, 7\ns_add_u32 {t0}, {t0}, {t1}\ns_add_u32 {t2}, {t0}, {8*1792}')
        a(f's_add_u32 {t3}, {t3}, {YT}\ns_lshl_b32 {t1}, {sW}, 11')
        self.poll('v7', 'v6', SWS, sTag, sCnt, 'lo32', sleep=8)
        a(f's_add_u32 m0, {t1}, {TILE}')
        a(f'buffer_load_dwordx4 v2, {SWS}, {t3} offen sc1 lds')
        a(f'buffer_load_dwordx4 v3, {SWS}, {t3} offen offset:1024 sc1 lds')
        a('s_waitcnt vmcnt(0)\ns_barrier')
        self.stamp(8)
        for j in range(2):
            for e in range(4):
                a(f'ds_read_b32 v{20+4*j+e}, v{4+j} offset:{TILE+e*256}')
        a('s_waitcnt lgkmcnt(4)')
        a(f'buffer_store_dwordx4 v[20:23], v8, {SOUT}, {t0} offen')
        a('s_waitcnt lgkmcnt(0)')
        a(f'buffer_store_dwordx4 v[24:27], v8, {SOUT}, {t2} offen')
        self.stamp(9)
        self.dump_stamps(SWS, sW)
        a('L_exit:')
        a('s_endpgm')

    def build(self):
        a = self.a
        a('s_cmp_ge_u32 s2, 256\ns_cbranch_scc1 L_notB')
        self.role_B()
        a('L_notB:')
        a('s_cmp_ge_u32 s2, 512\ns_cbranch_scc1 L_exit')
        self.role_A()
        body = a.text()
        return (HEADER + '.amdgcn_target "amdgcn-amd-amdhsa--gfx950"\n.text\n'
                f'.globl {NAME}_kernel\n.p2align 12\n.p2align 8\n.type {NAME}_kernel,@function\n{NAME}_kernel:\n'
                + body +
                f'''.section .rodata,"a"
.p2align 6
.amdhsa_kernel {NAME}_kernel
  .amdhsa_next_free_vgpr 256
  .amdhsa_next_free_sgpr 102
  .amdhsa_accum_offset 256
  .amdhsa_group_segment_fixed_size 0
  .amdhsa_kernarg_size 104
  .amdhsa_user_sgpr_count 2
  .amdhsa_user_sgpr_kernarg_segment_ptr 1
  .amdhsa_system_sgpr_workgroup_id_x 1
.end_amdhsa_kernel
''')


if __name__ == '__main__':
    opt = {}
    out = f'cdna_kernels/{NAME}.s'
    for x in sys.argv[1:]:
        k, val = x.split('=')
        if k == 'out': out = val
        else: opt[k] = int(val)
    g = Gen(**opt)
    open(out, 'w').write(g.build())
    print('wrote', out, 'nops added', g.a.nops_added)
```

```python
import re

TRANS = ('v_exp_', 'v_log_', 'v_rcp_', 'v_rsq_', 'v_sqrt_', 'v_sin_', 'v_cos_')


def regs_of(tok):
    t = tok.strip()
    t = t.lstrip('-').strip('|')
    if t.startswith('abs(') and t.endswith(')'):
        t = t[4:-1]
    m = re.fullmatch(r'([vsa])(\d+)', t)
    if m:
        return m.group(1), {int(m.group(2))}
    m = re.fullmatch(r'([vsa])\[(\d+):(\d+)\]', t)
    if m:
        return m.group(1), set(range(int(m.group(2)), int(m.group(3)) + 1))
    if t == 'vcc':
        return 's', {106, 107}
    if t == 'exec':
        return 's', {126, 127}
    if t == 'm0':
        return 's', {124}
    return None, set()


class Ins:
    def __init__(self, text):
        self.text = text
        code = text.split(';')[0].strip()
        self.label = code.endswith(':')
        self.directive = code.startswith('.') and not self.label
        self.empty = (code == '')
        self.mn = ''
        self.vw = set(); self.vr = set(); self.sw = set(); self.sr = set()
        self.srcc = set(); self.srcab = set(); self.sdata = set()
        if self.label or self.directive or self.empty:
            return
        parts = code.split(None, 1)
        self.mn = mn = parts[0]
        ops = []
        if len(parts) > 1:
            ops = [o.strip() for o in re.split(r',(?![^\[]*\])', parts[1])]
            last = ops[-1].split()
            self.mods = last[1:]
            ops[-1] = last[0]
        else:
            self.mods = []
        self.ops = ops
        self.mfma = mn.startswith('v_mfma') or mn.startswith('v_smfmac')
        self.valu = mn.startswith('v_') and not self.mfma
        self.trans = mn.startswith(TRANS)
        self.vmem = mn.startswith('buffer_') or mn.startswith('global_')
        self.ds = mn.startswith('ds_')
        self.salu = mn.startswith('s_')
        self.dma = self.vmem and 'lds' in self.mods

        def rd(tok):
            k, r = regs_of(tok)
            if k == 'v': self.vr |= r
            elif k == 's': self.sr |= r
            return r if k == 'v' else set()

        def wr(tok):
            k, r = regs_of(tok)
            if k == 'v': self.vw |= r
            elif k == 's': self.sw |= r

        if self.mfma:
            self.passes = 8 if '32x32' in mn else 4
            wr(ops[0])
            self.srcab = rd(ops[1]) | rd(ops[2])
            if mn.startswith('v_smfmac'):
                self.srcab |= rd(ops[3])
                self.srcc = rd(ops[0])
            else:
                self.srcc = rd(ops[3])
        elif self.valu:
            wr(ops[0])
            rest = ops[1:]
            if mn.startswith(('v_add_co', 'v_sub_co', 'v_addc_co')):
                wr(ops[1]); rest = ops[2:]
            for o in rest: rd(o)
            if mn.startswith('v_permlane') and 'swap' in mn:
                rd(ops[0]); wr(ops[1])
            if mn.startswith(('v_fmac', 'v_writelane')) or '_dpp' in mn:
                rd(ops[0])
        elif self.ds:
            if mn.startswith(('ds_read', 'ds_bpermute', 'ds_permute', 'ds_swizzle')):
                wr(ops[0])
                for o in ops[1:]: rd(o)
            else:
                for o in ops: rd(o)
        elif self.vmem:
            if mn.startswith(('buffer_wbl2', 'buffer_inv')):
                pass
            elif 'load' in mn and not self.dma:
                wr(ops[0])
                for o in ops[1:]: rd(o)
            else:
                for o in ops: rd(o)
                if 'atomic' in mn and 'sc0' in self.mods: wr(ops[0])
                if 'store' in mn and ('x4' in mn or 'x3' in mn):
                    self.sdata = regs_of(ops[0])[1]
            if self.dma: self.sr |= {124}
        elif self.salu:
            nodst = mn.startswith(('s_cmp', 's_cbranch', 's_branch', 's_waitcnt', 's_barrier', 's_nop', 's_sleep',
                                   's_setprio', 's_endpgm', 's_bitcmp'))
            if ops and not nodst:
                wr(ops[0])
                for o in ops[1:]: rd(o)
                if 'saveexec' in mn: self.sw |= {126, 127}
            else:
                for o in ops: rd(o)
            if mn.startswith('s_cbranch_vcc'): self.sr |= {106, 107}

    def states(self):
        if self.label or self.directive or self.empty: return 0
        if self.mn == 's_nop': return int(self.ops[0], 0) + 1
        return 1


def need(p, c):
    n = 0
    if p.valu:
        if c.mfma and (p.vw & c.vr): n = max(n, 2)
        if p.trans and c.valu and (p.vw & (c.vr | c.vw)): n = max(n, 1)
        if p.trans and (c.ds or c.vmem) and (p.vw & c.vr): n = max(n, 1)
        if c.mn.startswith(('v_readfirstlane', 'v_readlane')) and (p.vw & c.vr): n = max(n, 1)
        if (c.mn.startswith('v_permlane') or '_dpp' in c.mn) and (p.vw & c.vr): n = max(n, 2)
        if p.sw:
            if c.vmem and (p.sw & c.sr): n = max(n, 5)
            if c.valu and (p.sw & c.sr):
                n = max(n, 4 if c.mn.startswith(('v_readlane', 'v_writelane')) else 2)
            if c.salu and (p.sw & c.sr): n = max(n, 2)
    if p.mfma:
        big = p.passes == 8
        if c.mfma:
            if p.vw & c.srcab: n = max(n, 12 if big else 8)
            if p.vw & c.srcc:
                if not (p.vw == c.srcc and p.passes == c.passes): n = max(n, 10 if big else 6)
        elif (c.valu or c.ds or c.vmem) and (p.vw & (c.vr | c.vw)):
            n = max(n, 12 if big else 8)
        if c.valu and (p.srcc & c.vw): n = max(n, 7 if big else 3)
    if p.salu and 124 in p.sw and c.vmem and c.dma: n = max(n, 1)
    if p.vmem and p.sdata and (p.sdata & c.vw): n = max(n, 2)
    return n


class Asm:
    def __init__(self):
        self.L = []
        self.nops_added = 0

    def __call__(self, text):
        for line in text.split('\n'):
            line = line.strip()
            if line == '': continue
            self._one(line)

    def _one(self, line):
        c = Ins(line)
        if not (c.label or c.directive or c.empty):
            dist = 0
            pad = 0
            for p in reversed(self.L):
                if dist >= 13: break
                if p.label or p.directive or p.empty: continue
                if p.mn == 's_endpgm' or (p.mn == 's_branch' and not p.ops[0].startswith('L_pg_')): break
                k = need(p, c)
                if k > dist: pad = max(pad, k - dist)
                dist += p.states()
            if pad:
                self.L.append(Ins(f's_nop {pad-1}'))
                self.nops_added += 1
        self.L.append(c)

    def raw(self, line):
        c = Ins('.raw')
        c.text = '    ' + line
        self.L.append(c)

    def text(self):
        out = []
        for i in self.L:
            out.append(i.text if (i.label or i.directive) else '    ' + i.text)
        return '\n'.join(out) + '\n'


def v(i, n=1):
    return f'v{i}' if n == 1 else f'v[{i}:{i+n-1}]'


def s(i, n=1):
    return f's{i}' if n == 1 else f's[{i}:{i+n-1}]'
```

```python
import sys, struct, math
from asmlib import Asm, v, s

NAME = 'concat_heads__ssm_conv_s4d__softmax_full_mha__prompt'

EPOCH = 0
FKV = 0x1000
FO = 0x9000
FU = 0x11000
FY = 0x19000
ONES = 0x21000
FS = 0x41000
STAMP = 0x50000
KWS = 0x90000
VWS = KWS + 28672
OWS = KWS + 2 * 28672
UT = 0x620000
YT = 0x801000
WS_SIZE = 0xA00000
KT_STRIDE = 90240
SPIN = 40000


def f2u(x):
    return struct.unpack('<I', struct.pack('<f', x))[0]


def hx(x):
    return f'0x{x & 0xffffffff:08x}'


HEADER = """; Kernarg layout for this problem (104 bytes, ptrs only, base s[0:1]):
;   offset  80: d_out     shape=(1, 2048, 896) dtype=bfloat16
; Workgroups 256..511: attention branch (QKV projection, softmax attention, output projection).
; @launch grid=(512,1,1) block=(256,1,1) lds=81920
"""


class Gen:
    def __init__(self, **opt):
        self.o = dict(stamps=0, rt=0, rot=2, prioA=2, prioB=1, prioA2=0, codepf=1, ufl=1, mwarm=0, stalepad=0, fullout=0, kgap=6, kyield=0, prioB0=-1, prioB1=3, kB1=27, omod_=1, ulate=1, padS=-1, ysleep=48, wo0=24, wostep=8, tlbw=0, pfd=9, lz2=15, otouch=0, atouch=0, lzp=0, lz=4, mon=0, prioA0=2, ufirst=0, amem=7, aexit=0, noA=0, nconv=8, nokgen=0, onesc=0, sigp=0, nconv0=0, localY=0, prioA3=0, ldsh=1, opre=1, attst=0, noload=0, omod=0, nwo=9, fullflag=1, force_slow=0, wsrot=0, hpx=8,
                      pollpos=8, npre=3, nearly=4, nmid=3, local=0, outsc=3, kprio=0, q1=20, og=16, opoll=0, oflag=62, opre_=0, oat=1, oown=1, force_retry=0, prioA4=3, upos=2, tlb=1, wowarm=2, delayB=0, nowait=0, astamp=0, prioB2=1)
        self.o.update(opt)
        self.a = Asm()
        self.nlab = 0

    def lab(self, base):
        self.nlab += 1
        return f'L_{base}_{self.nlab}'

    def stamp(self, i):
        if self.o['attst'] == 2 and i >= 10: return
        if self.o['stamps'] == 2:
            if i == 0: self.a('s_memrealtime s[100:101]')
            return
        if self.o['stamps'] and self.o['rt'] == 2:
            m = {0: 0, 2: 1, 3: 2, 5: 3, 8: 4, 9: 5, 12: 6}
            if i in m: self.a(f's_memtime s[{68+4*m[i]}:{69+4*m[i]}]\ns_memrealtime s[{70+4*m[i]}:{71+4*m[i]}]')
            if i == 0: self.a('s_memrealtime s[100:101]')
            if i == 14: self.a('s_memtime s[96:97]')
        elif self.o['stamps']:
            self.a(f'{"s_memrealtime" if self.o["rt"] else "s_memtime"} s[{68+2*i}:{69+2*i}]')
            if i == 0: self.a('s_memrealtime s[100:101]')

    def page(self, name, back, fall=True):
        a = self.a
        if fall: a(f's_branch L_pg_{name}')
        a('.p2align 12')
        a(f'L_stub_{name}:')
        if isinstance(back, dict):
            for k, b in back.items():
                a(f'L_stub_{name}{k}:')
                a.raw(f's_branch {b}')
        elif back:
            a.raw(f's_branch {back}')
            a.raw('s_nop 0')
        a(f'L_pg_{name}:')

    def touch(self, swave, targets, back):
        a = self.a
        for w, name in targets.items():
            a(f's_cmp_eq_u32 {swave}, {w}\ns_cbranch_scc1 L_stub_{name}')
        a(f'{back}:')

    def dump_stamps(self, srd, swave):
        if not self.o['stamps']:
            return
        a = self.a
        a('s_memrealtime s[98:99]')
        a('s_waitcnt lgkmcnt(0)')
        a(f's_lshl_b32 s3, s2, 2\ns_add_u32 s3, s3, {swave}\ns_lshl_b32 s3, s3, 7\ns_add_u32 s3, s3, {STAMP}')
        a('s_mov_b64 exec, 1\nv_mov_b32 v1, 0')
        for i in range(15 if self.o['stamps'] == 2 else 0, 17):
            a(f'v_mov_b32 v2, s{68+2*i}')
            a(f'buffer_store_dword v2, v1, {srd}, s3 offen offset:{4*i}')
        a('s_mov_b64 exec, -1')

    def srd(self, d, b, size):
        self.a(f's_mov_b32 s{d}, s{b}\ns_mov_b32 s{d+1}, s{b+1}\ns_mov_b32 s{d+2}, {size}\ns_mov_b32 s{d+3}, 0x00020000')

    def poll(self, vdst, vaddr, srd, stag, scnt, mask, first_issued=False, sleep=4, atomic=False, lazy=False):
        a = self.a
        lp = self.lab('poll'); dn = self.lab('polldone'); chk = self.lab('pollchk')
        a(f's_mov_b32 {scnt}, {SPIN}')
        self.setexec(mask)
        if first_issued:
            a(f's_branch {chk}')
        a(f'{lp}:')
        if lazy: a(f's_sleep {sleep}')
        if atomic: a(f'v_mov_b32 {vdst}, 0\nbuffer_atomic_or {vdst}, {vaddr}, {srd}, 0 offen sc0')
        else: a(f'buffer_load_dword {vdst}, {vaddr}, {srd}, 0 offen sc1')
        a(f'{chk}:')
        a('s_waitcnt vmcnt(0)')
        a(f'v_cmp_ne_u32 vcc, {stag}, {vdst}')
        a(f's_sub_u32 {scnt}, {scnt}, 1')
        a(f's_cbranch_vccz {dn}')
        a(f's_cbranch_scc1 {dn}')
        if not lazy: a(f's_sleep {sleep}')
        a(f's_branch {lp}')
        a(f'{dn}:')
        a('s_mov_b64 exec, -1')

    def poll2(self, va, vb, vaddr, srd, stag, scnt, mask):
        a = self.a
        lp = self.lab('poll'); dn = self.lab('polldone')
        a(f's_mov_b32 {scnt}, {SPIN}')
        self.setexec(mask)
        a(f'{lp}:')
        for x, y in ((vb, va), (va, vb)):
            a(f'v_mov_b32 {x}, 0\nbuffer_atomic_or {x}, {vaddr}, {srd}, 0 offen sc0')
            a(f's_waitcnt vmcnt(1)\nv_cmp_ne_u32 vcc, {stag}, {y}\ns_cbranch_vccz {dn}')
        a(f's_sub_u32 {scnt}, {scnt}, 1\ns_cbranch_scc0 {lp}')
        a(f'{dn}:')
        a('s_mov_b64 exec, -1')

    def setexec(self, mask):
        if mask == 'lo32':
            self.a('s_mov_b32 exec_hi, 0')
        else:
            self.a(f's_mov_b64 exec, {mask}')

    def flag_store(self, swave, soff, srd, stag, vt0, vt1, drain=False, near=None, word1=None):
        a = self.a
        sk = self.lab('noflag')
        a(f's_cmp_lg_u32 {swave}, 0\ns_cbranch_scc1 {sk}')
        a(f'v_lshlrev_b32 {vt0}, 2, v1\nv_mov_b32 {vt1}, {stag}')
        if word1: a(f'v_writelane_b32 {vt1}, {word1}, 1')
        self.setexec('lo32' if self.o['fullflag'] else '1')
        if near:
            l1, l2 = self.lab('far'), self.lab('near')
            a(f's_cmp_eq_u64 {near}, 0\ns_cbranch_scc0 {l1}')
            a(f'buffer_store_dword {vt1}, {vt0}, {srd}, {soff} offen\ns_branch {l2}\n{l1}:')
        a(f'buffer_store_dword {vt1}, {vt0}, {srd}, {soff} offen sc1')
        if near: a(f'{l2}:')
        a('s_mov_b64 exec, -1')
        if drain:
            j = self.lab('flagjoin')
            a(f's_waitcnt vmcnt(1)\ns_branch {j}\n{sk}:\ns_waitcnt vmcnt(0)\n{j}:')
        else:
            a(f'{sk}:')

    def ws_srd(self, d, stag, tmp):
        a = self.a
        if self.o['wsrot']:
            a(f's_and_b32 {tmp}, {stag}, 15\ns_mul_i32 {tmp}, {tmp}, 0xc00000\ns_add_u32 s{d}, s28, {tmp}\ns_addc_u32 s{d+1}, s29, 0')
            a(f's_mov_b32 s{d+2}, {WS_SIZE}\ns_mov_b32 s{d+3}, 0x00020000')
        else:
            self.srd(d, 28, WS_SIZE)

    def B_regs(self):
        self.SX, self.SW, self.SWS, self.SWO, self.SOUT = 's[4:7]', 's[8:11]', 's[12:15]', 's[32:35]', 's[36:39]'
        self.sx = [f's{42+p}' for p in range(7)]
        self.sw = [f's{49+p}' for p in range(7)]

    def B_dma(self, p):
        L = [f's_add_u32 m0, s57, {(p % 4) * 8192}']
        for q in range(2):
            L.append(f'buffer_load_dwordx4 v{6+q}, {self.SW}, {self.sw[p]} offen offset:{1024*q} lds')
        L.append(f's_add_u32 m0, s56, {(p % 3) * 16384}')
        for q in range(4):
            L.append(f'buffer_load_dwordx4 v{2+q}, {self.SX}, {self.sx[p]} offen offset:{1024*q} lds')
        return L

    def B_prologue(self):
        a = self.a; o = self.o
        self.B_regs()
        sx, sw = self.sx, self.sw
        sW, sH, sT, sJ, sV, sTag = 's16', 's17', 's30', 's31', 's40', 's41'
        sM4, sM2, sK = 's56', 's57', 's59'
        t0, t1, t2, t3, sDq = 's61', 's62', 's63', 's64', 's65'
        WQ = 49152
        a('L_roleB:')
        if o['padS'] >= 0: a('s_memrealtime s[100:101]')
        self.stamp(0)
        a(f's_setprio {o["prioB0"] if o["prioB0"] >= 0 else o["prioB"]}')
        a('v_lshrrev_b32 v2, 6, v0\nv_and_b32 v1, 63, v0')
        a(f'v_readfirstlane_b32 s58, v2')
        a(f's_and_b32 {t0}, s2, 7\ns_bfe_u32 {sJ}, s2, 0x30003')
        if o['hpx'] == 8:
            a(f's_and_b32 {sV}, {t0}, 1\ns_bfe_u32 {t1}, s2, 0x20006')
            a(f's_and_b32 {sT}, {t0}, 6\ns_lshl_b32 {sT}, {sT}, 1\ns_add_u32 {sT}, {sT}, {t1}')
            a(f's_mul_i32 {t3}, {sV}, 3\ns_add_u32 {t3}, {t3}, {t1}')
            a(f's_lshl_b32 {t1}, {t1}, 1')
        else:
            a(f's_bfe_u32 {sV}, s2, 0x10006\ns_bfe_u32 {t1}, s2, 0x10007')
            a(f's_lshl_b32 {sT}, {t0}, 1\ns_add_u32 {sT}, {sT}, {t1}')
            a(f's_bfe_u32 {t3}, s2, 0x20006\ns_lshl_b32 {t3}, {t3}, 1')
            a(f's_lshl_b32 {t1}, {t1}, 2')
        a(f's_mul_i32 {t2}, {sV}, 7\ns_add_u32 {t2}, {t2}, {sJ}\ns_add_u32 {t2}, {t2}, 7')
        a(f's_cmp_eq_u32 {sJ}, 7\ns_cselect_b32 {t2}, {t3}, {t2}\ns_lshl_b32 {sDq}, {t2}, 7')
        a(f's_mul_i32 {t3}, s58, {16*2688}\ns_add_u32 {t2}, {sDq}, {t3}')
        a(f's_lshl_b32 {t0}, {sT}, 2\ns_add_u32 {t0}, {t0}, s58\ns_mul_i32 {t0}, {t0}, 28672')
        if o['rot'] == 2:
            if o['hpx'] == 8: a(f's_and_b32 {t1}, s2, 6\ns_mul_i32 {t3}, {sV}, 3\ns_add_u32 {t1}, {t1}, {t3}')
            else: a(f's_and_b32 {t1}, s2, 7')
            a(f's_cmp_ge_u32 {t1}, 7\ns_cselect_b32 {t3}, 7, 0\ns_sub_u32 {t1}, {t1}, {t3}')
        elif o['rot']:
            a(f's_add_u32 {t1}, {t1}, {sJ}')
            a(f's_cmp_ge_u32 {t1}, 7\ns_cselect_b32 {t3}, 7, 0\ns_sub_u32 {t1}, {t1}, {t3}')
        else:
            a(f's_mov_b32 {t1}, 0')

        def offs(p):
            if p: a(f's_add_u32 {t1}, {t1}, 1\ns_cmp_eq_u32 {t1}, 7\ns_cselect_b32 {t1}, 0, {t1}')
            a(f's_lshl_b32 {sx[p]}, {t1}, 7\ns_add_u32 {sx[p]}, {sx[p]}, {t0}')
            a(f's_mul_i32 {sw[p]}, {t1}, {64*2688}\ns_add_u32 {sw[p]}, {sw[p]}, {t2}')
        offs(0)
        a(f's_lshl_b32 {sM4}, s58, 12\ns_lshl_b32 {sM2}, s58, 11\ns_add_u32 {sM2}, {sM2}, 49152')
        a('v_lshrrev_b32 v17, 3, v1\nv_and_b32 v18, 7, v1\nv_lshrrev_b32 v19, 4, v1')
        a('v_xor_b32 v20, v18, v19\nv_lshlrev_b32 v20, 4, v20')
        a('v_mul_u32_u24 v2, 896, v17\nv_xor_b32 v21, 64, v20')
        a(f'v_add_u32 v3, {7168-1024}, v2\nv_add_u32 v3, v3, v21\nv_add_u32 v2, v2, v20')
        a(f'v_add_u32 v4, {2*(7168-1024)}, v2\nv_add_u32 v5, {2*(7168-1024)}, v3')
        a('v_and_b32 v20, 1, v19\nv_lshlrev_b32 v20, 2, v20\nv_xor_b32 v20, v18, v20\nv_lshlrev_b32 v20, 4, v20')
        a(f'v_mul_u32_u24 v6, 2688, v17\nv_add_u32 v6, v6, v20\nv_add_u32 v7, {8*2688-1024}, v6')
        a('s_waitcnt lgkmcnt(0)')
        if o['delayB']: a('s_sleep 127\ns_sleep 127')
        self.srd(4, 18, 2048 * 896)
        self.srd(8, 20, 448 * 2688)
        for x in self.B_dma(0): a(x)
        offs(1)
        D1 = self.B_dma(1)
        for x in D1[:o['npre']]: a(x)
        self.stamp(1)
        a(f's_cmp_eq_u32 {sV}, 1\ns_cbranch_scc1 L_pg_B1V\ns_branch L_pg_B1K')
        self.B_offs, self.B_D1 = offs, D1[o['npre']:]

    def B_setup(self, isV):
        a = self.a; o = self.o
        offs = self.B_offs
        sW, sH, sT, sJ, sV, sTag = 's16', 's17', 's30', 's31', 's40', 's41'
        sM4, sM2, sK = 's56', 's57', 's59'
        t0, t1, t2, t3, sDq = 's61', 's62', 's63', 's64', 's65'
        a(f's_load_dword {sTag}, s[28:29], {EPOCH}')
        a(f's_mov_b32 {sW}, s58')
        for p in range(2, 7): offs(p)
        a(f's_lshl_b32 {sH}, {sV}, 3\ns_add_u32 {sH}, {sH}, {sJ}')
        a(f's_mul_i32 {sK}, {sH}, 7\ns_lshr_b32 {sK}, {sK}, 1\ns_lshl_b32 {sK}, {sK}, 4')
        a(f's_sub_u32 {sDq}, {sK}, {sDq}')
        self.srd(32, 22, 448 * 896)
        self.srd(36, 24, 2048 * 1792)
        a('v_and_b32 v17, 31, v1\nv_lshrrev_b32 v18, 5, v1')
        a('v_bfe_u32 v19, v17, 1, 3\nv_xor_b32 v19, v19, v18\nv_lshlrev_b32 v19, 4, v19')
        a(f'v_lshl_add_u32 v20, v17, 7, {sM4}')
        for ss in range(4):
            a(f'v_xor_b32 v21, {32*ss}, v19\nv_add_u32 v{8+ss}, v20, v21')
        a('v_bfe_u32 v19, v1, 2, 2\nv_lshl_add_u32 v20, v18, 3, v19')
        a('v_and_b32 v21, 3, v1\nv_bfe_u32 v22, v1, 4, 1\nv_lshl_add_u32 v21, v22, 2, v21')
        a('v_and_b32 v22, 1, v1\nv_bfe_u32 v23, v1, 1, 1\nv_lshl_add_u32 v22, v22, 1, v23')
        a('v_and_b32 v23, 4, v21\nv_add_u32 v22, v22, v23')
        a(f'v_lshlrev_b32 v15, 6, v20\nv_lshl_add_u32 v15, v22, 3, v15')
        a(f's_cmp_eq_u32 {sV}, 1\ns_cselect_b64 vcc, -1, 0')
        a('v_cndmask_b32 v21, v22, v21, vcc')
        a('v_lshrrev_b32 v19, 1, v19\nv_lshlrev_b32 v19, 6, v19')
        a('v_lshlrev_b32 v21, 3, v21\nv_lshlrev_b32 v20, 7, v20\nv_add_u32 v20, 49152, v20')
        a('v_xor_b32 v12, v21, v19\nv_xor_b32 v13, 64, v12\nv_add_u32 v12, v12, v20\nv_add_u32 v13, v13, v20')
        a('v_lshrrev_b32 v19, 2, v1\nv_and_b32 v20, 3, v1\nv_mul_u32_u24 v14, 2688, v19\nv_lshl_add_u32 v14, v20, 4, v14')
        a('v_and_b32 v19, 0x13, v17\nv_bfe_u32 v20, v17, 2, 1\nv_lshl_or_b32 v19, v20, 3, v19')
        a('v_bfe_u32 v20, v17, 3, 1\nv_lshl_or_b32 v19, v20, 2, v19')
        a('v_lshlrev_b32 v19, 4, v19\nv_lshl_add_u32 v19, v18, 9, v19')
        a('v_mul_u32_u24 v20, 7168, v18\nv_lshl_add_u32 v20, v17, 4, v20')
        a('v_cndmask_b32 v16, v19, v20, vcc')
        a(f's_lshl_b32 {t1}, {sJ}, 12\ns_add_u32 {t1}, {t1}, {KWS}\ns_lshl_b32 {t2}, {sJ}, 10\ns_add_u32 {t2}, {t2}, {VWS}')
        a(f's_lshl_b32 {t0}, {sT}, 2\ns_add_u32 {t0}, {t0}, {sW}\ns_mul_i32 {t0}, {t0}, {KT_STRIDE}')
        a(f's_lshl_b32 s66, {sH}, 11\ns_add_u32 s66, s66, {t0}\ns_add_u32 s66, s66, {OWS}')
        a(f's_cmp_eq_u32 {sV}, 1\ns_cselect_b32 {t1}, {t2}, {t1}\ns_add_u32 {t0}, {t0}, {t1}')
        a(f's_cmp_eq_u32 {sJ}, 7\ns_cselect_b32 {t0}, {WS_SIZE}, {t0}\ns_add_u32 {t1}, {t0}, 14336')
        a(f's_lshl_b32 {t2}, {sW}, 10')
        u0, u1 = 's18', 's19'
        a(f's_lshl_b32 {u0}, {sK}, 5\nv_lshlrev_b32 v250, 4, v1\nv_add_u32 v19, {u0}, v250')
        a(f's_and_b32 {u0}, s2, 63\ns_lshl_b32 {u0}, {u0}, 7\ns_bfe_u32 {u1}, s2, 0x20006\ns_lshl_b32 {u1}, {u1}, 15')
        a(f's_add_u32 {u0}, {u0}, {u1}\ns_add_u32 {u0}, {u0}, {ONES}\nv_mov_b32 v204, {u0}')
        a('v_and_b32 v203, 1, v1\nv_mul_u32_u24 v203, 14336, v203\nv_add_u32 v203, v204, v203')
        for e in range(4): a(f'v_mov_b32 v{208+e}, 0x3f803f80\nv_mov_b32 v{212+e}, 0')
        a(f's_mul_i32 {u0}, {sH}, 448\ns_add_u32 {u0}, {u0}, {VWS}')
        a('v_bfe_u32 v205, v17, 3, 1\nv_and_b32 v206, 3, v17\nv_lshl_add_u32 v205, v205, 2, v206')
        a('v_cmp_gt_u32 vcc, 16, v17\nv_cmp_ne_u32 s[26:27], 7, v205')
        a('v_bfe_u32 v206, v17, 2, 1\nv_mad_u32_u24 v205, v206, 7, v205\nv_lshrrev_b32 v206, 4, v17\nv_mad_u32_u24 v205, v206, 14, v205')
        a(f'v_mul_u32_u24 v251, 7168, v18\nv_lshl_add_u32 v251, v205, 4, v251\nv_add_u32 v251, {u0}, v251')
        a(f'v_mov_b32 v206, {WS_SIZE}\nv_cndmask_b32 v204, v206, v204, vcc\nv_mov_b32 v22, {KT_STRIDE}')
        a('v_cndmask_b32 v251, v204, v251, s[26:27]\nv_cndmask_b32 v22, 0, v22, s[26:27]')
        a(f's_lshl_b32 {u0}, {sW}, 1\nv_mad_u32_u24 v20, v22, {u0}, v251')
        a(f's_mul_i32 {u0}, {sH}, 28\ns_lshr_b32 {u1}, {u0}, 6\ns_add_u32 {u0}, {u0}, 27\ns_lshr_b32 {u0}, {u0}, 6')
        a(f's_sub_u32 {u0}, {u0}, {u1}\ns_add_u32 {u1}, {u1}, {FKV//128}')
        a(f'v_and_b32 v207, {u0}, v1\nv_and_b32 v205, 2, v1\nv_lshl_add_u32 v207, v205, 2, v207\nv_add_lshl_u32 v207, v207, {u1}, 7')
        a(f's_and_b32 s67, {sT}, 12\ns_max_u32 s67, s67, 2\ns_lshl_b32 {u0}, s67, 11')
        a('v_and_b32 v205, 60, v1\nv_lshl_add_u32 v248, v205, 9, v207')
        a(f'v_and_b32 v205, 12, v1\nv_lshl_add_u32 v249, v205, 9, v207\nv_add_u32 v249, {u0}, v249')
        a(f's_lshr_b32 {u0}, {sW}, 1\nv_lshl_add_u32 v207, {u0}, 11, v207')
        a(f's_lshl_b32 {u0}, {sT}, 4\ns_add_u32 {u0}, {u0}, {sH}\ns_lshl_b32 s60, {u0}, 7\ns_add_u32 {u0}, s60, {FKV}')
        a(f's_cmp_eq_u32 {sW}, 0\ns_cselect_b32 {u0}, {u0}, {WS_SIZE}\nv_lshl_add_u32 v23, v17, 2, {u0}')
        cq = f2u(28 ** -0.5 * math.log2(math.e))
        a(f's_and_b32 {u0}, {sH}, 1\nv_mov_b32 v200, {hx(cq)}')
        a(f'v_cmp_gt_u32 vcc, {u0}, v18\nv_cmp_lt_u32 s[26:27], {u0}, v18')
        a(f'v_add_u32 v255, {sM4}, v250')
        for i in range(3): a(f'v_add_u32 v{252+i}, {4096*(i+1)}, v255\nv_and_b32 v{252+i}, 0x3fff, v{252+i}')
        a('v_cndmask_b32 v201, v200, 0, vcc\nv_cndmask_b32 v202, v200, 0, s[26:27]')
        a('v_lshrrev_b32 v21, 3, v1\nv_and_b32 v205, 7, v1\nv_bfe_u32 v206, v1, 4, 1')
        a('v_lshlrev_b32 v206, 2, v206\nv_xor_b32 v205, v205, v206\nv_mul_u32_u24 v21, 896, v21\nv_lshl_add_u32 v21, v205, 4, v21')
        a(f's_lshl_b32 {u0}, {sJ}, 7\ns_mul_i32 {u1}, {sW}, 7168\ns_add_u32 {u0}, {u0}, {u1}\nv_add_u32 v21, {u0}, v21\ns_mov_b32 s34, 28672')
        a(f's_and_b32 {u0}, s2, 0x86\ns_cmp_eq_u32 {u0}, 0\ns_cselect_b32 s19, {WS_SIZE}, 0')
        a(f's_mul_i32 s18, {sW}, {2*KT_STRIDE}\ns_add_u32 s18, s18, {KWS}')
        self.touch(sW, {w: 'B%d' % (2 + w) + 'KV'[isV] for w in range(4)}, 'L_backB1' + 'KV'[isV])
        for x in self.B_D1: a(x)

    def role_B(self):
        a = self.a; o = self.o
        SX, SW, SWS, SWO, SOUT = self.SX, self.SW, self.SWS, self.SWO, self.SOUT
        sx, sw = self.sx, self.sw
        sW, sH, sT, sJ, sV, sTag = 's16', 's17', 's30', 's31', 's40', 's41'
        sM4, sM2, sCnt, sK, sC14 = 's56', 's57', 's58', 's59', 's60'
        t0, t1, t2, t3, sDq = 's61', 's62', 's63', 's64', 's65'
        slot = lambda p: ((p + 1) % 3) * 24576
        QX, RED, WO = 49152, 0, 23552
        X = lambda k: 24 + 4 * k
        ACC = [136, 152]
        WF = lambda k, n: 168 + 8 * (k % 4) + 4 * n
        PK = 168
        NE = o['nearly']

        NM = o['nmid']
        wq_at = lambda p: 16384 * (1 + p // 4) + 1024 * (p % 4)

        def wq_dma(p):
            return [f's_add_u32 m0, {sM4}, {wq_at(p)}', f's_add_u32 {sw[p]}, {sw[p]}, {sDq}',
                    f'buffer_load_dwordx4 v14, {SW}, {sw[p]} offen lds']

        def b1(isV):
            Qd = []

            def rd(tag, ins):
                Qd.append(tag); a(ins)

            def need(tags):
                last = max(i for i, t in enumerate(Qd) if t in tags)
                return min(15, len(Qd) - 1 - last)

            def RX(p):
                return [(('x', 4 * p + ss), f'ds_read_b128 {v(X(4*p+ss),4)}, v{8+ss} offset:{(p%3)*16384}') for ss in range(4)]

            def RW(k):
                p, ss = divmod(k, 4)
                return [(('w', k, n), f'ds_read_b64_tr_b16 {v(WF(k,n)+2*b,2)}, v{12+n} offset:{(p%4)*8192+ss*2048+b*512}')
                        for n in range(2) for b in range(2)]

            def M(k, n):
                c = '0' if k == 0 else v(ACC[n], 16)
                A_, B_ = (X(k), WF(k, n)) if isV else (WF(k, n), X(k))
                return f'v_mfma_f32_32x32x16_bf16 {v(ACC[n],16)}, {v(A_,4)}, {v(B_,4)}, {c}'
            self.B_setup(int(isV))
            for x in self.B_dma(2): a(x)
            if o['prioB0'] >= 0: a(f's_setprio {o["prioB"]}')
            a('s_waitcnt vmcnt(12) lgkmcnt(0)')
            a('s_barrier')
            self.stamp(2)
            for x in RX(0)[:1] + RW(0) + RX(0)[1:] + RW(1): rd(*x)
            D3 = self.B_dma(3)
            for x in D3[:3]: a(x)
            a(f's_add_u32 {sTag}, {sTag}, 0x9e3779b9')
            self.ws_srd(12, sTag, t3)
            a('s_add_u32 s20, s12, s18\ns_addc_u32 s21, s13, 0\ns_mov_b32 s22, 28672\ns_mov_b32 s23, 0x00020000')
            a(f's_add_u32 s24, s12, 14336\ns_addc_u32 s25, s13, 0\ns_mov_b32 s26, {WS_SIZE-14336}\ns_mov_b32 s27, 0x00020000')
            DX = (0, D3[3:])
            D = []
            for k in range(28):
                R = RW(k + 2) if k + 2 < 28 else []
                tags = {('x', k), ('w', k, 0), ('w', k, 1)}
                if DX and (k == 0 or k % 4 == 3):
                    tags |= {('x', 4 * DX[0] + 3)}
                    D = D + DX[1]; DX = None
                a(f's_waitcnt lgkmcnt({need(tags)})')
                a(M(k, 0))
                if k % 4 == 2 and k + 2 < 28:
                    p1 = (k + 2) // 4
                    assert not D and not DX
                    a(f's_waitcnt vmcnt({12 if p1 <= 4 else (6 + NE if p1 == 5 else NE)}) lgkmcnt(0)')
                    a('s_barrier')
                    R = RX(p1) + R
                    if p1 <= 3:
                        Dn = self.B_dma(p1 + 3)
                        D = Dn[:3]; DX = (p1, Dn[3:])
                    if p1 == 4 and NE:
                        DX = (p1, sum([wq_dma(p) for p in range(NE)], []))
                h = (len(R) + 1) // 2
                for x in R[:h]: rd(*x)
                a(M(k, 1))
                if o['prioB1'] >= 0 and k == o['kB1']: a(f's_setprio {o["prioB1"]}')
                for x in R[h:]: rd(*x)
                nd = 3 if len(D) <= 6 else 6
                for x in D[:nd]: a(x)
                D = D[nd:]
            assert not D and not DX
            self.stamp(3)
            for n in range(2):
                for kk in range(2):
                    r = PK + 8 * n + 4 * kk
                    for e in range(4):
                        src = ACC[n] + 8 * kk + 2 * e
                        a(f'v_cvt_pk_bf16_f32 v{r+e}, v{src}, v{src+1}')
                    if isV:
                        a(f'buffer_store_dwordx4 {v(r,4)}, v16, {SWS}, {t1 if kk else t0} offen offset:{512*n} sc1')
                    else:
                        a(f'buffer_store_dwordx4 {v(r,4)}, v16, {SWS}, {t0} offen offset:{2048*n+1024*kk} sc1')
            for p in range(NE, NE + NM):
                for x in wq_dma(p): a(x)
        self.page('B1K', None, fall=False)
        b1(False)
        a('s_branch L_pg_B2')
        self.page('B1V', None, fall=False)
        b1(True)
        BK = {'K': 'L_backB1K', 'V': 'L_backB1V'}
        self.page('B2', BK)
        assert NE == 4 and NM == 3
        AQ, QPK = 216, 112
        WR = lambda k: 136 + 4 * (k % 8)
        O = lambda i: 24 + 16 * i

        def rdq(k):
            p, ss = divmod(k, 4)
            return [f'ds_read_b64_tr_b16 {v(WR(k)+2*b,2)}, v15 offset:{wq_at(p)+ss*4096+b*256}' for b in range(2)]

        def qproj(k0, k1, extra={}):
            for k in range(k0, min(k0 + 4, k1)):
                for x in rdq(k): a(x)
            for x in extra.get(-1, []): a(x)
            for k in range(k0, k1):
                left = min(k1 - 1, k + 3) - k
                a(f's_waitcnt lgkmcnt({2*left})')
                c = '0' if k == 0 else v(AQ, 16)
                a(f'v_mfma_f32_32x32x16_bf16 {v(AQ,16)}, {v(WR(k),4)}, {v(X(k),4)}, {c}')
                if k + 4 < k1:
                    for x in rdq(k + 4): a(x)
                for x in extra.get(k, []):
                    if x[0] == '@': self.stamp(int(x[1:]))
                    else: a(x)
        Q1 = o['q1']
        ex = {-1: [f'buffer_store_dwordx4 v[208:211], v203, {SWS}, 0 offen' + ' sc1' * o['onesc'],
                   f'buffer_load_dword v7, v207, {SWS}, s19 offen sc1', f'v_mov_b32 v6, {sTag}', 'v_mov_b32 v5, 0xdddddddd']}
        if o['padS'] >= 0: ex[-1].append('v_writelane_b32 v6, s100, 2\nv_writelane_b32 v6, s100, 34')
        P = (f's_lshl_b32 s43, s67, 2\ns_sub_u32 s43, s43, {sW}\ns_sub_u32 s43, s43, 1\ns_mul_i32 s45, s43, {KT_STRIDE}\n'
             f's_and_b32 s53, {sTag}, 0xbfff0000\ns_or_b32 s53, s53, 0x20000000\ns_mov_b32 s44, {FO-FKV}').split('\n')
        for k, x in enumerate(P): ex[k] = [x]
        fl = [f's_waitcnt vmcnt({NM+2})', 's_barrier', '@4', f'buffer_store_dword v6, v23, {SWS}, 0 offen sc1']
        if Q1 <= 16: ex.setdefault(Q1 - 1, []).extend(fl)
        a(f's_waitcnt vmcnt({4+NM})')
        a('s_barrier')
        qproj(0, 16, ex)
        for i in range(4):
            a(f'v_mfma_f32_32x32x16_bf16 {v(O(i),16)}, v[212:215], v[212:215], 0')
        if Q1 > 16:
            for x in fl:
                if x[0] == '@': self.stamp(4)
                else: a(x)
        KVB = lambda T: 168 + 16 * (T % 5)
        KV = lambda T, j: KVB(T) + 4 * j
        Q = lambda i, kk: 88 + 8 * i + 4 * kk
        S = lambda b: 120 + 16 * b

        def kvload(T):
            wrap = T in (5, 9, 13)
            adv = 'v_add_u32 v20, v22, v20' if T == 0 else f'v_mad_i32_i24 v20, v22, {"s43" if T == 1 or wrap else 4}, v20'
            if T < 2: advk = f's_add_u32 s20, s20, {"s45" if T else KT_STRIDE}\ns_addc_u32 s21, s21, 0'
            elif not wrap: advk = f's_add_u32 s20, s20, {4*KT_STRIDE}\ns_addc_u32 s21, s21, 0'
            else: advk = (f's_cmp_eq_u32 s67, {17-T}\ns_cselect_b32 s43, -52, 4\ns_cselect_b32 s49, -1, 0\n'
                          f's_mul_i32 s45, s43, {KT_STRIDE}\ns_add_u32 s20, s20, s45\ns_addc_u32 s21, s21, s49')
            return [f'buffer_load_dwordx4 {v(KV(T,0),4)}, v19, s[20:23], 0 offen sc1',
                    f'buffer_load_dwordx4 {v(KV(T,1),4)}, v19, s[20:23], 0 offen offset:1024 sc1',
                    f'buffer_load_dwordx4 {v(KV(T,2),4)}, v20, {SWS}, 0 offen sc1',
                    f'buffer_load_dwordx4 {v(KV(T,3),4)}, v20, s[24:27], 0 offen sc1',
                    advk, adv]
        a(f's_waitcnt vmcnt(1)\nv_cmp_ne_u32 s[54:55], {sTag}, v7')
        a('s_barrier')
        self.stamp(5)
        a('s_cmp_eq_u64 s[54:55], 0\ns_cbranch_scc0 L_notyet')
        L01 = kvload(0) + kvload(1)
        qproj(16, 28, {16 + j: [x] for j, x in enumerate(L01)})
        a('L_qepi:')
        self.qrest = lambda: qproj(16, 28)
        self.stamp(6)
        for e in range(16):
            sc = 201 if e < 4 else (202 if e >= 12 else 200)
            a(f'v_mul_f32 v{AQ+e}, v{sc}, v{AQ+e}')
            if e % 8 == 7:
                for q in range(e // 2 - 3, e // 2 + 1):
                    a(f'v_cvt_pk_bf16_f32 v{QPK+q}, v{AQ+2*q}, v{AQ+2*q+1}')
                a(f'ds_write_b128 v255, {v(QPK+4*(e//8),4)} offset:{QX+1024*(e//8)}')
        self.kv01 = L01
        self.stamp(7)
        lzl = f'buffer_load_dword v7, v249, {SWS}, s19 offen sc1'
        if o['lzp'] < 0: a(lzl)
        a(f's_waitcnt vmcnt({7 if o["lzp"] < 0 else 6})')
        self.stamp(8)
        if o['prioB2'] != (o['prioB1'] if o['prioB1'] >= 0 else o['prioB']): a(f's_setprio {o["prioB2"]}')
        seq = [(0, 3), (1, 3)] + [(T, i) for T in (0, 1) for i in range(3)] + [(n // 4, n % 4) for n in range(8, 52)] + [(T, i) for i in range(4) for T in (13, 14, 15)]

        def qk(n, half):
            T, i = seq[n]
            c = '0' if half == 0 else v(S(n % 3), 16)
            return f'v_mfma_f32_32x32x16_bf16 {v(S(n%3),16)}, {v(KV(T,half),4)}, {v(Q(i,half),4)}, {c}'

        def pv(n, half):
            T, i = seq[n]
            return f'v_smfmac_f32_32x32x32_bf16 {v(O(i),16)}, {v(KV(T,2+half),4)}, {v(S(n%3)+8*half,8)}, v5'

        def redw(i, q):
            return f'ds_write_b128 v{252+i}, {v(O(i)+4*q,4)} offset:{RED+q*1024}'
        SH = {}
        put = lambda n, q, t, tag=None: SH.setdefault((n, q), []).append((tag, t))
        LZ = o['lz']
        if o['lzp'] >= 0: put(o['lzp'], 1, lzl, ('F', 0))
        put(LZ - 1, 3, '@wait', ('F', 0)); put(LZ - 1, 3, f'v_cmp_ne_u32 vcc, {sTag}, v7')
        put(LZ, 0, 's_cbranch_vccnz L_lazy\nL_lazyback:')
        LZ2 = o['lz2']
        put(LZ2 - 5, 3, f'buffer_load_dword v7, v248, {SWS}, 0 offen sc1', ('F', 1))
        put(LZ2 - 1, 3, '@wait', ('F', 1)); put(LZ2 - 1, 3, f'v_cmp_ne_u32 vcc, {sTag}, v7')
        put(LZ2, 0, 's_cbranch_vccnz L_lazy3\nL_lazyback3:')
        nxt = LZ
        for T in range(2, 16):
            L = kvload(T)
            A_ = L[4].split('\n')
            want = min(4 * T - o['pfd'], 2 * T + 17)
            if T == 6: nxt = max(nxt, LZ2)
            if nxt > want or T >= 13:
                n = max(nxt, want)
                put(n, 1, L[0], ('K', T)); put(n, 2, L[1], ('K', T))
                put(n + 1, 0, L[2], ('V', T)); put(n + 1, 1, L[3], ('V', T))
                if T < 15:
                    if len(A_) > 2: put(n, 3, '\n'.join(A_[:4]))
                    put(n + 1, 2, '\n'.join(A_[-2:])); put(n + 1, 2, L[5])
                nxt = n + 2
                continue
            pk = want
            put(pk, 1, L[0], ('K', T)); put(pk + 1, 1, L[1], ('K', T))
            put(pk + 2, 0, L[2], ('V', T)); put(pk + 3, 0, L[3], ('V', T))
            if len(A_) > 2:
                put(pk, 0, A_[0]); put(pk, 2, '\n'.join(A_[1:3])); put(pk + 1, 0, A_[3])
            put(pk + 1, 2, '\n'.join(A_[-2:])); put(pk + 3, 2, L[5])
            nxt = pk + 4
        seenK, seenV = {0, 1}, set()
        for n in range(64):
            T = seq[n][0]
            if T not in seenK: put(n - 2, 3, '@wait', ('K', T)); seenK.add(T)
            if T not in seenV: put(n, 3, '@wait', ('V', T)); seenV.add(T)
        used = lambda n, q: sum(t.count('\n') + 1 for _, t in SH.get((n, q), []))

        def place(pos, t, tag=None):
            need_ = t.count('\n') + 1
            while used(pos // 4, pos % 4) + need_ > (1 if (pos % 4 < 2 or tag) else 2): pos += 1
            put(pos // 4, pos % 4, t, tag)
            return pos + 1
        pos = place(4 * o['wo0'], 's_barrier')
        for k in range(14):
            pos = place(max(pos, 4 * o['wo0'] + o['wostep'] * k), f's_add_u32 m0, {t2}, {WO+4096*k}')
            pos = place(pos, f'buffer_load_dwordx4 v21, {SWO}, 0 offen lds', ('W', 1))
            if k < 13: pos = place(pos, 's_add_u32 s32, s32, 28672\ns_addc_u32 s33, s33, 0')
        assert pos < 4 * 54
        oflag = f'buffer_store_dword v6, v23, {SWS}, s44 offen sc1'
        for i in range(3):
            n = 56 + 3 * i
            for q in range(4): put(n + (q + 2) // 4, (q + 2) % 4, redw(i, q))
            if i == 0: put(n + 1, 2, '@wait', ('W', 1))
            put(n + 1, 3, 's_waitcnt lgkmcnt(0)\ns_barrier')
            if o['oflag'] == n + 1: put(n + 1, 3, oflag, ('S', 1))
            for j, q in enumerate((1, 0, 2, 3)):
                put(n + 2 if i < 2 else 63, j if i < 2 else 3, f'ds_read_b128 {v(O(i)+4*q,4)}, v255 offset:{RED+q*1024}')
            if i < 2:
                put(n + 3, 1, 's_waitcnt lgkmcnt(0)\ns_barrier')
                if o['oflag'] == n + 3: put(n + 3, 1, oflag, ('S', 1))
        put(48, 2, f's_mov_b32 {t0}, {hx(f2u(2.0**-24))}'); put(49, 2, f's_mov_b32 {t1}, {hx(f2u(2.0**40))}')
        put(49, 1, 's_movk_i32 s43, 0x1f8')
        if o['opre_']:
            put(52, 2, f's_lshl_b32 {t3}, {sT}, 11\ns_add_u32 {t3}, {t3}, {FO}')
            put(53, 2, f'v_and_b32 v10, 15, v1\nv_lshl_add_u32 v10, v10, 7, {t3}')
            put(54, 2, f's_cmp_eq_u32 {sW}, 1\ns_cselect_b32 s46, 0, {WS_SIZE}')
        OO = O(3)
        if o['attst']:
            if o['attst'] == 1:
                for j, n in enumerate((1, 8, 20, 32, 44, 52, 63)): put(n, 0, f's_memtime s[{70+2*j}:{71+2*j}]')
            else:
                for j, n in enumerate((2, 4, 8, 14, 17)): put(n, 1, f's_memrealtime s[{88+2*j}:{89+2*j}]')
        VQ = [('K', 0)] * 2 + [('V', 0)] * 2 + [('K', 1)] * 2 + [('V', 1)] * 2 + [('F', 0)] * (o['lzp'] < 0)
        a(qk(0, 0)); a(qk(0, 1))
        a('s_waitcnt lgkmcnt(0)')
        a('s_barrier')
        for i in range(3):
            a(f'ds_read_b128 {v(Q(i,0),4)}, v{252+i} offset:{QX}\nds_read_b128 {v(Q(i,1),4)}, v{252+i} offset:{QX+1024}')
        a(f's_waitcnt vmcnt({3 if o["lzp"] < 0 else 2})')
        put(0, 3, 's_waitcnt lgkmcnt(0)')
        for n in range(64):
            if n == self.o.get('pgB3', 16): self.page('B3', BK)
            if n == self.o.get('pgB4', 48): self.page('B4', BK)
            M = [qk(n + 1, 0) if n < 63 else None, qk(n + 1, 1) if n < 63 else None,
                 pv(n - 1, 0) if n > 0 else None, pv(n - 1, 1) if n > 0 else None]
            if n == 63: M = [M[2], M[3], None, pv(63, 0)]
            for q in range(4):
                if M[q]: a(M[q])
                for tag, x in SH.pop((n, q), []):
                    if x == '@wait':
                        last = max(j for j, t in enumerate(VQ) if t == tag)
                        if not o['nowait']: a(f's_waitcnt vmcnt({len(VQ)-1-last})')
                    else:
                        if not (o['noload'] and tag and tag[0] in 'KV'): a(x)
                        if tag: VQ.append(tag)
                for e in range(4):
                    r = S(n % 3) + 4 * q + e
                    a(f'v_exp_f32 v{r}, v{r}')
        assert not SH, SH
        a(pv(63, 1))
        if o['oflag'] == 65: a(oflag)
        if o['opre_'] == 1: a(f'buffer_load_dword v11, v10, {SWS}, s46 offen sc1')
        self.stamp(9)
        for e in range(15): a(f'v_add_f32 v{O(0)+e}, v{O(0)+e}, v{O(1)+e}')
        a('s_waitcnt lgkmcnt(0)')
        for qi, q in enumerate((1, 0, 2, 3)):
            for i in (0, 2):
                for e in range(4 * q, 4 * q + 4, 2):
                    a(f'v_pk_add_f32 {v(OO+e,2)}, {v(OO+e,2)}, {v(O(i)+e,2)}')
            if qi == 0:
                a(f'v_rcp_f32 v20, v{OO+7}')
                a(f'v_cmp_le_f32 s[54:55], {t0}, v{OO+7}\nv_cmp_ge_f32 vcc, {t1}, v{OO+7}')
                a(f'v_pk_add_f32 v[8:9], {v(OO+4,2)}, {v(OO+6,2)}')
            else:
                a(f'v_pk_add_f32 v[8:9], v[8:9], {v(OO+4*q,2)}\nv_pk_add_f32 v[8:9], v[8:9], {v(OO+4*q+2,2)}')
            if qi == 1: a('s_and_b64 s[54:55], s[54:55], vcc')
        a('v_add_f32 v8, v8, v9')
        a('v_cmp_class_f32 vcc, v8, s43')

        def norm(kk):
            for e in range(0, 8, 2):
                r = OO + 8 * kk + e
                a(f'v_pk_mul_f32 {v(r,2)}, {v(r,2)}, v[20:21] op_sel_hi:[1,0]')
            for e in range(4):
                a(f'v_cvt_pk_bf16_f32 v{24+4*kk+e}, v{OO+8*kk+2*e}, ' + (f'v{OO+8*kk+2*e+1}' if e < 3 else 's53'))
        self.norm = norm
        norm(0)
        a('s_and_b64 s[54:55], s[54:55], vcc')
        a('s_cmp_eq_u64 s[54:55], -1')
        a('s_cbranch_scc0 L_slow' if not o['force_slow'] else 's_branch L_slow')
        a('L_checked:')
        if o['opre_'] == 2: a(f'buffer_load_dword v11, v10, {SWS}, s46 offen sc1')
        a(f'buffer_store_dwordx4 v[24:27], v250, {SWS}, s66 offen sc1')
        norm(1)
        a(f'buffer_store_dwordx4 v[28:31], v250, {SWS}, s66 offen offset:1024 sc1')
        if o['oflag'] == 64: a(oflag)
        self.stamp(10)
        a(f's_cmp_eq_u32 {sJ}, 7\ns_cbranch_scc1 L_nojob')
        a('v_bfe_u32 v19, v1, 2, 2\nv_mad_u32_u24 v20, v18, 7, v19')
        a('v_and_b32 v21, 1, v1\nv_bfe_u32 v22, v1, 1, 1\nv_lshl_add_u32 v21, v21, 2, v22')
        a('v_bfe_u32 v22, v1, 4, 1\nv_lshl_add_u32 v21, v22, 1, v21\nv_lshlrev_b32 v21, 3, v21')
        a(f's_and_b32 {t1}, {sW}, 1\nv_bfe_u32 v19, v20, 1, 1\nv_xor_b32 v19, {t1}, v19')
        a(f'v_lshl_add_u32 v21, v19, 6, v21\nv_lshl_add_u32 v3, v20, 7, v21\nv_add_u32 v3, {WO}, v3\nv_xor_b32 v2, 64, v3')
        self.stamp(11)
        self.page('B5', BK)
        WOF = lambda k: 32 + 4 * k
        RL = [f'ds_read_b64_tr_b16 {v(WOF(k)+2*b,2)}, {"v2" if k & 1 else "v3"} offset:{(14*k+4*b)*128}' for k in range(32) for b in range(2)]
        P = []
        pp = lambda t: P.extend(t.split('\n'))
        pp(f's_lshr_b32 {t1}, {sW}, 1\ns_lshl_b32 {t1}, {t1}, 13\nv_add_u32 v4, {t1}, v250')
        pp(f's_lshl_b32 s44, {sT}, 2\ns_lshl_b32 {t1}, {sV}, 1\ns_add_u32 s44, s44, {t1}')
        pp(f's_lshr_b32 {t1}, {sW}, 1\ns_add_u32 {t3}, s44, {t1}\ns_mul_i32 s44, {t3}, {KT_STRIDE}')
        pp(f's_add_u32 s50, s44, {OWS}\ns_and_b32 {t1}, {sW}, 1\ns_lshl_b32 {t1}, {t1}, 12\ns_add_u32 s44, s50, {t1}')
        for y in range(1, 4): pp(f's_add_u32 s{44+y}, s44, {8192*y}')
        TR = 65536
        if o['fullout']:
            pp(f's_lshr_b32 {t1}, {sW}, 1\ns_mul_i32 {t1}, {t1}, 4608\ns_add_u32 {t1}, {t1}, {TR}\ns_and_b32 {t0}, {sW}, 1')
            pp(f's_lshl_b32 s48, {t0}, 6\ns_add_u32 s48, s48, {t1}')
            pp(f'v_mul_u32_u24 v8, 144, v17\nv_lshl_add_u32 v8, v18, 5, v8\nv_add_u32 v8, s48, v8')
            pp(f's_mul_i32 s48, {t0}, 2304\ns_add_u32 s48, s48, {t1}')
            pp(f'v_lshrrev_b32 v17, 3, v1\nv_and_b32 v19, 7, v1\nv_mul_u32_u24 v9, 144, v17\nv_lshl_add_u32 v9, v19, 4, v9\nv_add_u32 v9, s48, v9')
            pp('v_mul_u32_u24 v10, 1792, v17\nv_lshl_add_u32 v10, v19, 4, v10')
            pp(f's_mul_i32 s48, {t3}, {32*1792}\ns_lshl_b32 {t1}, {sJ}, 7\ns_add_u32 s48, s48, {t1}')
            pp(f's_mul_i32 {t1}, {t0}, {16*1792}\ns_add_u32 s48, s48, {t1}\ns_add_u32 s48, s48, 896')
            pp(f's_add_u32 s51, s48, {8*1792}\nv_mov_b32 v5, 0')
        else:
            pp(f's_mul_i32 {t1}, {sW}, 2560\ns_add_u32 {t1}, {t1}, {TR}')
            pp(f'v_mul_u32_u24 v8, 80, v17\nv_lshl_add_u32 v8, v18, 5, v8\nv_add_u32 v8, {t1}, v8')
            pp(f'v_lshrrev_b32 v17, 2, v1\nv_and_b32 v19, 3, v1\nv_mul_u32_u24 v9, 80, v17\nv_lshl_add_u32 v9, v19, 4, v9\nv_add_u32 v9, {t1}, v9')
            pp('v_mul_u32_u24 v10, 1792, v17\nv_lshl_add_u32 v10, v19, 4, v10')
            pp(f's_mul_i32 s48, {t3}, {32*1792}\ns_lshl_b32 {t1}, {sJ}, 7\ns_add_u32 s48, s48, {t1}')
            pp(f's_and_b32 {t1}, {sW}, 1\ns_lshl_b32 {t1}, {t1}, 6\ns_add_u32 s48, s48, {t1}\ns_add_u32 s48, s48, 896')
            pp(f's_add_u32 s51, s48, {16*1792}\nv_mov_b32 v5, 0')
        if o['otouch']:
            pp(f'v_mov_b32 v19, 0\nbuffer_load_dword v15, v19, {SOUT}, s48 offen')
        a(f's_lshl_b32 {t1}, {sT}, 11\ns_add_u32 {t1}, {t1}, {FO}\nv_lshl_add_u32 v6, v1, 7, {t1}\ns_mov_b64 s[54:55], 0xffff')
        if o['oown']: a(f's_bitset0_b32 s54, {sH}')
        for j, x in enumerate(RL):
            if j == o['opoll'] and o['oflag']:
                nopoll = self.lab('nopoll')
                a(f's_cmp_lg_u32 {sW}, 1\ns_cbranch_scc1 {nopoll}')
                if o['oat']: a(f'v_mov_b32 v7, 0\ns_mov_b64 exec, s[54:55]\nbuffer_atomic_or v7, v6, {SWS}, 0 offen sc0\ns_mov_b64 exec, -1\n{nopoll}:')
                else: a(f'buffer_load_dword v7, v6, {SWS}, 0 offen sc1\n{nopoll}:')
            a(x)
            if P: a(P.pop(0))
        assert not P
        nopoll = self.lab('nopoll')
        a(f's_cmp_lg_u32 {sW}, 1\ns_cbranch_scc1 {nopoll}')
        if o['opre_']:
            a(f's_waitcnt vmcnt(3)\nv_cmp_ne_u32 vcc, {sTag}, v11\ns_cbranch_vccz {nopoll}')
        if not o['oflag']: pass
        elif o['oat']: self.poll2('v7', 'v11', 'v6', SWS, sTag, sCnt, 's[54:55]')
        else: self.poll('v7', 'v6', SWS, sTag, sCnt, '-1', first_issued=True, sleep=2)
        a(f'{nopoll}:')
        a('s_waitcnt lgkmcnt(0)')
        a('s_barrier')
        self.stamp(12)
        for y in range(4):
            a(f's_add_u32 m0, {sM4}, {16384*y}')
            for q in range(4):
                a(f'buffer_load_dwordx4 v250, {SWS}, s{44+y} offen offset:{1024*q} sc1 lds')
                if y < 2:
                    for k in range(16 * y + 4 * q, 16 * y + 4 * q + 4): a(f'v_and_b32 v{WOF(k)+3}, 0xffff, v{WOF(k)+3}')
        OF = lambda k: 160 + 4 * (k % 16)
        AO = 224
        rdo = lambda k: f'ds_read_b128 {v(OF(k),4)}, v4 offset:{16384*(k//8)+1024*(k%8)}'
        mfo = lambda k: f'v_mfma_f32_32x32x16_bf16 {v(AO,16)}, {v(WOF(k),4)}, {v(OF(k),4)}, {"0" if k == 0 else v(AO,16)}'
        def chk(q):
            L = [f'v_xor_b32 v5, s53, v{OF(4*q)+3}']
            L += [f'v_bitop3_b32 v5, v5, v{OF(k)+3}, s53 bitop3:0xf6' for k in range(4 * q + 1, 4 * q + 4)]
            return L + ['v_cmp_lt_u32 vcc, 0xffff, v5']
        br = lambda q: ('s_cbranch_vccnz' if not o['force_retry'] else 's_branch') + f' L_stale{q}\nL_fresh{q}:'
        a('s_waitcnt vmcnt(12)')
        a('s_barrier')
        for k in range(8): a(rdo(k))
        a('s_waitcnt lgkmcnt(4)')
        for x in chk(0): a(x)
        a(br(0))
        for k in range(32):
            a(mfo(k))
            q = k // 4 + 1
            if q == 8: continue
            if q % 2 == 0:
                if k % 4 == 0: a(f's_waitcnt vmcnt({12-2*q})\ns_barrier')
                if k % 4 < 2:
                    for j in range(4): a(rdo(4 * q + 4 * (k % 4) + j))
                if k % 4 == 2:
                    a('s_waitcnt lgkmcnt(4)')
                    for x in chk(q): a(x)
            elif k % 4 == 1:
                a('s_waitcnt lgkmcnt(0)')
                for x in chk(q): a(x)
            if k % 4 == 3: a(br(q))
        self.stamp(13)
        for e in range(8):
            a(f'v_cvt_pk_bf16_f32 v{240+e}, v{AO+2*e}, v{AO+2*e+1}')
            if e == 3: a('ds_write_b128 v8, v[240:243]')
        a('ds_write_b128 v8, v[244:247] offset:16')
        if o['fullout']: a('s_waitcnt lgkmcnt(0)\ns_barrier')
        a(f'ds_read_b128 v[248:251], v9\nds_read_b128 v[252:255], v9 offset:{1152 if o["fullout"] else 1280}')
        a('s_waitcnt lgkmcnt(1)')
        a(f'buffer_store_dwordx4 v[248:251], v10, {SOUT}, s48 offen' + ' sc1' * (o['outsc'] >> 1))
        a('s_waitcnt lgkmcnt(0)')
        a(f'buffer_store_dwordx4 v[252:255], v10, {SOUT}, s51 offen' + ' sc1' * (o['outsc'] >> 1))
        self.stamp(14)
        self.dump_stamps(SWS, sW)
        a('s_endpgm')
        for q in range(8):
            a(f'L_stale{q}:')
            if o['stalepad']: a('s_sleep 127\n' * 8)
            if o['stamps']: a('s_mov_b32 s70, 0')
            a(f's_mov_b32 {sCnt}, {SPIN}\ns_add_u32 {t1}, s50, {4096*q}')
            a(f'L_again{q}:')
            for j in range(4):
                a(f'buffer_load_dwordx4 {v(OF(4*q+j),4)}, v250, {SWS}, {t1} offen offset:{1024*j} sc1')
            a('s_waitcnt vmcnt(0)')
            for x in chk(q): a(x)
            a(f's_sub_u32 {sCnt}, {sCnt}, 1')
            a(f's_cbranch_scc1 L_fresh{q}\ns_cbranch_vccnz L_again{q}\ns_branch L_fresh{q}')

        a('L_nojob:')
        self.stamp(11)
        a('s_cmp_lg_u32 s2, 511\ns_cbranch_scc1 L_nojob_end')
        a(f'v_min_u32 v6, 223, v0\nv_lshlrev_b32 v6, 7, v6\nv_add_u32 v6, {FU}, v6')
        if not o['noA'] and not o['aexit'] and o['amem'] & 1: self.poll('v7', 'v6', SWS, sTag, sCnt, '-1', sleep=16)
        a(f'v_lshlrev_b32 v6, 7, v0\nv_add_u32 v6, {FKV}, v6')
        self.poll('v7', 'v6', SWS, sTag, sCnt, '-1', sleep=16)
        a('s_barrier')
        if o['padS'] >= 0:
            a(f'v_and_b32 v6, 1, v1\nv_lshlrev_b32 v6, 10, v6\nv_bfe_u32 v7, v1, 1, 2\nv_lshl_add_u32 v6, v7, 13, v6\nv_add_u32 v6, {FKV+8}, v6')
            a(f'buffer_load_dword v7, v6, {SWS}, 0 offen sc1\ns_waitcnt vmcnt(0)')
            for x in range(8): a(f'v_readlane_b32 s{70+x}, v7, {x}')
            a('s_nop 3\ns_mov_b32 s80, s70\ns_mov_b32 s78, s70')
            for x in range(1, 8): a(f's_min_u32 s80, s80, s{70+x}\ns_max_u32 s78, s78, s{70+x}')
            a(f's_sub_u32 s81, s{70+o["padS"]}, s80\ns_mul_i32 s81, s81, 10\ns_add_u32 s81, s81, 3000\ns_add_u32 s81, s81, s80')
            a('L_pad:\ns_memrealtime s[98:99]\ns_waitcnt lgkmcnt(0)\ns_sub_u32 s98, s98, s81\ns_cmp_lt_i32 s98, 0\ns_cbranch_scc1 L_pad')
        self.srd(4, 28, 256)
        a(f's_mov_b32 {t0}, {EPOCH}')
        self.flag_store(sW, t0, 's[4:7]', sTag, 'v19', 'v20')
        a('L_nojob_end:')
        self.dump_stamps(SWS, sW)
        a('s_endpgm')
        a('L_notyet:')
        self.qrest()
        self.poll('v7', 'v207', SWS, sTag, sCnt, '15')
        for x in self.kv01: a(x)
        a('s_branch L_qepi')
        a('L_lazy:')
        a('s_cmp_eq_u32 s19, 0\ns_cbranch_scc1 L_lazy2')
        a(f's_add_u32 {t0}, s60, {FKV+2*2048}\nv_mov_b32 v8, {t0}')
        self.poll('v7', 'v8', SWS, sTag, sCnt, '1', atomic=True, sleep=8)
        a('L_lazy2:')
        self.poll('v7', 'v249', SWS, sTag, sCnt, '0xffff')
        a('s_branch L_lazyback')
        a('L_lazy3:')
        self.poll('v7', 'v248', SWS, sTag, sCnt, '-1')
        a('s_branch L_lazyback3')
        self.slow_path_site()

    def slow_path_site(self):
        a = self.a
        SWS, sK, sCnt, sC14 = self.SWS, 's59', 's58', 's60'
        K0, K1, V0, V1, S0, Q0, Q1, OO = 168, 172, 176, 180, 120, 112, 116, 72
        qk = (f'v_mfma_f32_32x32x16_bf16 {v(S0,16)}, {v(K0,4)}, {v(Q0,4)}, 0\n'
              f'v_mfma_f32_32x32x16_bf16 {v(S0,16)}, {v(K1,4)}, {v(Q1,4)}, {v(S0,16)}')
        ldk = (f'buffer_load_dwordx4 {v(K0,4)}, v19, {SWS}, {sK} offen sc1\n'
               f'buffer_load_dwordx4 {v(K1,4)}, v19, {SWS}, {sK} offen offset:1024 sc1\ns_add_u32 {sK}, {sK}, {KT_STRIDE}')
        a('L_slow:')
        a('v_mov_b32 v8, 0xff800000')
        a(f's_mov_b32 {sK}, {KWS}\ns_mov_b32 {sCnt}, 64')
        a('L_slow1:')
        a(ldk)
        a('s_waitcnt vmcnt(0)')
        a(qk)
        for e in range(0, 16, 2):
            a(f'v_max3_f32 v8, v8, v{S0+e}, v{S0+e+1}')
        a(f's_sub_u32 {sCnt}, {sCnt}, 1\ns_cmp_lg_u32 {sCnt}, 0\ns_cbranch_scc1 L_slow1')
        a('v_mov_b32 v7, v8\ns_nop 1\nv_permlane32_swap_b32 v8, v7\ns_nop 1\nv_max_f32 v8, v8, v7')
        for e in range(16): a(f'v_mov_b32 v{OO+e}, 0')
        a(f's_mov_b32 {sK}, {KWS}\ns_mov_b32 {sCnt}, 64')
        a('L_slow2:')
        a(ldk)
        a(f'buffer_load_dwordx4 {v(V0,4)}, v251, {SWS}, 0 offen sc1')
        a(f'buffer_load_dwordx4 {v(V1,4)}, v251, s[24:27], 0 offen sc1\nv_add_u32 v251, v22, v251')
        a('s_waitcnt vmcnt(0)')
        a(qk)
        for e in range(16): a(f'v_sub_f32 v{S0+e}, v{S0+e}, v8')
        for e in range(16): a(f'v_exp_f32 v{S0+e}, v{S0+e}')
        a(f'v_smfmac_f32_32x32x32_bf16 {v(OO,16)}, {v(V0,4)}, {v(S0,8)}, v5')
        a(f'v_smfmac_f32_32x32x32_bf16 {v(OO,16)}, {v(V1,4)}, {v(S0+8,8)}, v5')
        a('s_nop 15')
        a(f's_sub_u32 {sCnt}, {sCnt}, 1\ns_cmp_lg_u32 {sCnt}, 0\ns_cbranch_scc1 L_slow2')
        a(f'v_rcp_f32 v20, v{OO+7}')
        self.norm(0)
        a('s_branch L_checked')

    def tlb_warm(self):
        a = self.a
        if self.o['mwarm']:
            a('s_lshl_b32 s60, s2, 2\ns_add_u32 s60, s60, s36\ns_mul_i32 s61, s60, 1792\ns_mul_i32 s60, s60, 1280')
            a(f'v_min_u32 v253, 13, v1\nv_lshl_add_u32 v253, v253, 7, s61\nglobal_load_dword v2, v253, s[18:19]')
            a(f'v_min_u32 v252, 9, v1\nv_lshl_add_u32 v252, v252, 7, s60\nv_min_u32 v252, {448*2688-128}, v252\nglobal_load_dword v2, v252, s[20:21]')
        if not self.o['tlbw']: return
        a(f'v_min_u32 v253, 2, v1\nv_mul_u32_u24 v253, {23*KT_STRIDE}, v253\nv_add_u32 v253, {KWS+17*KT_STRIDE+90112}, v253')
        a(f'v_mov_b32 v252, 0x800000\nv_cmp_lt_u32 vcc, 2, v1\nv_cndmask_b32 v253, v253, v252, vcc')
        a('v_and_b32 v252, 1, v1\nv_mul_u32_u24 v252, 0x300000, v252\nv_mov_b32 v251, 0')
        a('global_load_dword v2, v253, s[28:29]\nglobal_load_dword v2, v252, s[24:25]\nglobal_load_dword v2, v251, s[22:23]')

    def selfrag(self, base, vidx, vown):
        a = self.a
        a(f'v_and_b32 v28, 1, {vidx}\nv_lshlrev_b32 v28, 4, v28\nv_lshlrev_b32 v28, v28, v19')
        a(f'v_cmp_eq_u32 vcc, {vown}, v18\nv_lshrrev_b32 v29, 1, {vidx}\nv_cndmask_b32 v28, 0, v28, vcc')
        for q in range(8):
            m = f's[{60+2*(q%2)}:{61+2*(q%2)}]'
            a(f'v_cmp_eq_u32 {m}, {q}, v29')
            if q: a(f'v_cndmask_b32 v{base+q-1}, 0, v28, s[{60+2*((q-1)%2)}:{61+2*((q-1)%2)}]')
        a(f'v_cndmask_b32 v{base+7}, 0, v28, s[62:63]')

    def A_prologue(self):
        a = self.a; o = self.o
        SU = 's[32:35]'
        sW, sG, sR, sP, sTag, sCnt, sLdt, sDsk, sCh, sHalf = ['s%d' % i for i in range(36, 46)]
        t0, t1, t2, t3, sFl = 's46', 's47', 's48', 's49', 's50'
        TILE = 52224
        self.stamp(0)
        a(f's_setprio {o["prioA"]}')
        a('v_lshrrev_b32 v2, 6, v0\nv_and_b32 v1, 63, v0')
        a(f'v_readfirstlane_b32 {sW}, v2')
        a(f's_and_b32 {sG}, s2, 7\ns_lshr_b32 {sR}, s2, 3')
        if o['codepf']:
            a('s_getpc_b64 s[60:61]\nL_pc:')
            a(f'v_lshrrev_b32 v8, 4, v0\nv_lshl_add_u32 v8, {sR}, 4, v8\nv_lshlrev_b32 v8, 7, v8')
            a('v_min_u32 v8, L_codeend-L_pc-4, v8\nv_mov_b32 v9, s61')
            a('v_add_co_u32 v8, vcc, s60, v8\nv_addc_co_u32 v9, vcc, 0, v9, vcc')
            a('global_load_dword v255, v[8:9], off')
        a(f's_and_b32 {t0}, s2, 0x86\ns_cmp_eq_u32 {t0}, 0\ns_cbranch_scc1 L_idle')
        a(f's_lshl_b32 {t0}, {sG}, 4\ns_add_u32 {t0}, {t0}, {sR}\ns_sub_u32 {t0}, {t0}, 16')
        a(f's_sub_u32 {sG}, {sG}, 2\ns_cselect_b32 {sG}, 6, {sG}\ns_cselect_b32 {sR}, {t0}, {sR}')
        if o['noA']: a('s_endpgm')
        a(f's_lshl_b32 {sP}, {sG}, 5\ns_add_u32 {sP}, {sP}, {sR}')
        a(f's_lshl_b32 {t0}, {sP}, 10\nv_lshl_add_u32 v2, v0, 2, {t0}')
        a(f's_and_b32 {sHalf}, {sW}, 1')
        a('v_lshrrev_b32 v5, 3, v1\nv_and_b32 v6, 7, v1\nv_lshrrev_b32 v7, 5, v1')
        a(f's_lshl_b32 {t0}, {sHalf}, 2\nv_or_b32 v7, {t0}, v7\nv_xor_b32 v7, v6, v7\nv_lshlrev_b32 v7, 4, v7')
        a('v_mul_u32_u24 v3, 896, v5\nv_xor_b32 v8, 32, v7')
        a(f'v_add_u32 v4, {7168-1024}, v3\nv_add_u32 v4, v4, v8\nv_add_u32 v3, v3, v7')
        a(f's_lshl_b32 {t0}, {sR}, 2\ns_add_u32 {t0}, {t0}, {sW}\ns_mul_i32 {t0}, {t0}, {16*896}')
        a(f's_lshl_b32 {t1}, {sG}, 7\ns_add_u32 {t0}, {t0}, {t1}')
        a(f's_lshl_b32 {t1}, {sW}, 11\ns_lshl_b32 {t2}, {sP}, 2')
        a(f's_add_u32 m0, {t1}, {TILE}')
        a('v_lshrrev_b32 v18, 5, v1\nv_mov_b32 v19, 0x3c00\nv_and_b32 v16, 15, v1\nv_bfe_u32 v17, v1, 4, 1')
        self.selfrag(48, 'v16', 'v17')
        a('s_waitcnt lgkmcnt(0)')
        def ldpar():
            for k in range(4):
                a(f'global_load_dword v{12+k}, v2, s[{6+2*k}:{7+2*k}]')
        if not o['ufirst']: ldpar()
        a(f's_load_dword {sLdt}, s[14:15], {t2}')
        a(f's_load_dword {sTag}, s[28:29], {EPOCH}')
        a(f's_load_dword {sDsk}, s[16:17], {t2}')
        self.srd(32, 4, 2048 * 896)
        a(f'buffer_load_dwordx4 v3, {SU}, {t0} offen lds')
        a(f'buffer_load_dwordx4 v4, {SU}, {t0} offen offset:1024 lds')
        if o['ufirst']: ldpar()
        assert not o['ufirst']
        self.tlb_warm()
        self.stamp(10)
        if o['prioA0'] != o['prioA']: a(f's_setprio {o["prioA0"]}')

    def role_A(self):
        a = self.a; o = self.o
        SWS, SOUT = 's[4:7]', 's[8:11]'
        sW, sG, sR, sP, sTag, sCnt, sLdt, sDsk, sCh, sHalf = ['s%d' % i for i in range(36, 46)]
        t0, t1, t2, t3, sFl = 's46', 's47', 's48', 's49', 's50'
        KC, UTL, TILE, XCH = 0, 36864, 52224, 60416
        UTS = 7584
        a(f's_lshl_b32 {sFl}, {sP}, 7\ns_lshr_b32 {sCh}, {sW}, 1')
        for e in range(4): a(f'v_mov_b32 v{16+e}, 0')
        a(f'v_and_b32 v8, 127, v0\nv_min_u32 v8, 89, v8\nv_lshlrev_b32 v8, 4, v8')
        a(f's_mul_i32 {t0}, {sCh}, {UTS}\nv_add_u32 v8, {t0}, v8')
        a(f'ds_write_b128 v8, v[16:19] offset:{UTL}')
        a('v_bfe_u32 v8, v0, 2, 3\nv_mul_u32_u24 v8, 4160, v8\nv_and_b32 v7, 3, v0\nv_lshl_add_u32 v8, v7, 4, v8')
        a(f'ds_write_b128 v8, v[16:19] offset:{KC}')
        a(f's_lshl_b32 {t0}, {sW}, 1\nv_lshrrev_b32 v7, 5, v1\nv_add_u32 v7, {t0}, v7')
        a('v_xor_b32 v7, v7, v6\nv_lshlrev_b32 v7, 4, v7\nv_lshl_add_u32 v7, v6, 9, v7')
        a('v_and_b32 v8, 3, v5\nv_lshl_add_u32 v9, v8, 2, v7')
        a('v_lshlrev_b32 v10, 13, v5\nv_lshl_add_u32 v10, v6, 4, v10')
        a(f's_lshl_b32 {t0}, {sG}, 2\ns_add_u32 {t0}, {t0}, {sW}\ns_lshl_b32 {t0}, {t0}, 16')
        a(f's_lshl_b32 {t1}, {sR}, 8\ns_add_u32 {t3}, {t0}, {t1}\ns_add_u32 s51, {t3}, {UT}')
        L2E = math.log2(math.e)
        l2e_hi = struct.unpack('<f', struct.pack('<f', L2E))[0]
        cL, cLlo, cLn2, cRev, c8, c256 = 's52', 's53', 's54', 's55', 's[56:57]', 's[58:59]'
        a(f's_mov_b32 {cL}, {hx(f2u(l2e_hi))}\ns_mov_b32 {cLlo}, {hx(f2u(L2E-l2e_hi))}\ns_mov_b32 {cLn2}, {hx(f2u(math.log(2)))}')
        a(f's_mov_b32 {cRev}, {hx(f2u(1/(2*math.pi)))}')
        a(f's_mov_b32 s56, {hx(f2u(8.0))}\ns_mov_b32 s57, s56\ns_mov_b32 s58, {hx(f2u(256.0))}\ns_mov_b32 s59, s58')

        def exp_bf16(d, x, ta, tb):
            return [f'v_mul_f32 {ta}, {cL}, {x}', f'v_fma_f32 {tb}, {x}, {cL}, -{ta}', f'v_exp_f32 {ta}, {ta}',
                    f'v_fma_f32 {tb}, {x}, {cLlo}, {tb}', f'v_mul_f32 {tb}, {cLn2}, {tb}', f'v_fma_f32 {ta}, {ta}, {tb}, {ta}',
                    f'v_cvt_pk_bf16_f32 {ta}, {ta}, {ta}', f'v_lshlrev_b32 {d}, 16, {ta}']
        a(f's_lshl_b32 {t0}, {sG}, 12\ns_add_u32 {t0}, {t0}, {FU}\nv_and_b32 v6, 31, v1\nv_lshl_add_u32 v6, v6, 7, {t0}')
        AK = 32
        SL, SH = 48, 56
        SET = lambda b: 64 + 32 * b
        TL, TH = 128, 160
        PL = lambda b: 192 + 16 * (b % 2)
        PH = 224
        MUL = lambda j, b: 240 + 2 * j + b
        BB = lambda c, b: 252 + 2 * c + b
        kslot = {0: 0, 4: 1, 1: 2, 5: 3, 2: 4, 6: 5, 3: 6, 7: 7, 8: 8, 516: 9, 512: 10, 520: 11, 1024: 12, 1032: 13, 1536: 14, 1544: 15}
        rows = [[0, 1, 2, 3, 4, 5, 6, 7], [0, 0, 2, 4, 4, 4, 6, 8]]
        tail = [512, 516, 520, 1024, 1032, 1536, 1544, 1544]
        nib = lambda L: sum(kslot[x] << (4 * i) for i, x in enumerate(L))
        selfrag = self.selfrag
        a('v_lshrrev_b32 v18, 5, v1\nv_mov_b32 v19, 0x3c00')
        a(f'v_bfe_u32 v17, v1, 2, 1\nv_mov_b32 v16, {hx(nib(rows[0]))}\nv_mov_b32 v30, {hx(nib(rows[1]))}')
        a(f'v_cmp_eq_u32 vcc, 1, v17\nv_bfe_u32 v28, v1, 3, 1\nv_and_b32 v29, 3, v1\nv_cndmask_b32 v16, v16, v30, vcc')
        a(f'v_and_b32 v31, 16, v1\nv_cmp_eq_u32 vcc, 16, v31\nv_mov_b32 v30, {hx(nib(tail))}\nv_lshl_add_u32 v28, v28, 2, v29')
        a('v_cndmask_b32 v16, v16, v30, vcc\nv_lshlrev_b32 v28, 2, v28\nv_bfe_u32 v16, v16, v28, 4')
        selfrag(SH, 'v16', 'v17')
        if o['omod_']: a('s_setreg_imm32_b32 hwreg(HW_REG_MODE, 9, 1), 0')
        self.touch(sW, {0: 'A1', 1: 'A2', 2: 'A3'}, 'L_backA')
        a('s_waitcnt lgkmcnt(0)')
        a(f's_add_u32 {sTag}, {sTag}, 0x9e3779b9')
        self.ws_srd(4, sTag, t0)
        self.srd(8, 24, 2048 * 1792)
        a(f's_lshl_b32 {t1}, {sCh}, 4\ns_lshr_b32 {sLdt}, {sLdt}, {t1}\ns_lshl_b32 {sLdt}, {sLdt}, 16')
        a(f's_lshr_b32 {sDsk}, {sDsk}, {t1}\ns_lshl_b32 {sDsk}, {sDsk}, 16')
        a(f'v_mov_b32 v28, {sLdt}')
        for x in exp_bf16('v11', 'v28', 'v29', 'v30'): a(x)
        a(f'v_mul_f32 v4, {hx(f2u(-L2E))}, v11\nv_mul_f32 v5, {cRev}, v11')
        a(f's_mov_b32 s56, {hx(f2u(16.0))}\ns_mov_b32 s57, 0x07060302')
        self.stamp(11)
        if o['ufirst']:
            a('s_waitcnt vmcnt(4)\ns_barrier')
            if o['prioA0'] != o['prioA']: a(f's_setprio {o["prioA"]}')
            for hq in range(2):
                for e in range(4): a(f'ds_read_b32 v{20+4*hq+e}, v9 offset:{TILE+hq*4096+e*128}')
            a('s_waitcnt vmcnt(0)')
        else:
            a(f's_waitcnt vmcnt({2+3*o["tlbw"]+2*o["mwarm"]})')
            if o['prioA0'] != o['prioA']: a(f's_setprio {o["prioA"]}')
        self.stamp(1)
        a('v_and_b32 v28, 0x7fff7fff, v14\nv_and_b32 v29, 0x7fff7fff, v15\nv_pk_max_u16 v28, v28, v29')
        a('v_lshlrev_b32 v29, 16, v28\nv_max_u32 v28, v28, v29')
        V = []
        MQ = []

        def vop(t, done=None, needs=None): V.append((t, done, needs))
        for ctl in ('row_shr:1', 'row_shr:2', 'row_shr:4', 'row_shr:8', 'row_bcast:15', 'row_bcast:31'):
            pass
        dpp = [f'v_max_u32_dpp v28, v28, v28 {c} row_mask:0xf bank_mask:0xf'
               for c in ('row_shr:1', 'row_shr:2', 'row_shr:4', 'row_shr:8', 'row_bcast:15', 'row_bcast:31')]

        def pmul(dr, di, sr, si, m, done=None):
            vop(f'v_pk_mul_f16 v{dr}, v{sr}, v{m} op_sel:[0,0] op_sel_hi:[1,0]')
            vop(f'v_pk_mul_f16 v{di}, v{sr}, v{m} op_sel:[0,1] op_sel_hi:[1,1]')
            vop(f'v_pk_fma_f16 v{dr}, v{si}, v{m}, v{dr} op_sel:[0,1,0] op_sel_hi:[1,1,1] neg_lo:[1,0,0] neg_hi:[1,0,0]')
            vop(f'v_pk_fma_f16 v{di}, v{si}, v{m}, v{di} op_sel:[0,0,0] op_sel_hi:[1,0,1]', done)

        urd = (f's_waitcnt vmcnt({3*o["tlbw"]+2*o["mwarm"]})\ns_barrier\n' +
               '\n'.join(f'ds_read_b32 v{20+4*hq+e}, v9 offset:{TILE+hq*4096+e*128}' for hq in range(2) for e in range(4)))
        ust = (f's_waitcnt lgkmcnt(0)\nbuffer_store_dwordx4 v[20:23], v10, {SWS}, s51 offen sc1\n'
               f'buffer_store_dwordx4 v[24:27], v10, {SWS}, s51 offen offset:128 sc1')

        def setup(job):
            tmp = [SET(0) + 8 * c + e for c in range(4) for e in range(1, 8)]
            Z = {p: (tmp[2 * i], tmp[2 * i + 1]) for i, p in enumerate((1, 2, 4, 8, 16, 32, 64, 128, 256, 512))}
            c4, c8 = (tmp[20], tmp[21]), (tmp[22], tmp[23])
            ta, tb, m128, m256 = tmp[24], tmp[25], tmp[26], tmp[27]
            for k in range(4):
                vop(f'v_lshlrev_b32 v{16+k}, 16, v{12+k}' if job == 0 else f'v_and_b32 v{16+k}, 0xffff0000, v{12+k}')
                if job == 0 and k in (0, 3): vop(dpp.pop(0))
            for i, x in enumerate(exp_bf16('v16', 'v16', 'v29', 'v30')):
                vop(x)
                if job == 0 and i in (1, 4, 7): vop(dpp.pop(0))
            vop('v_mul_f32 v17, v17, v5'); vop('v_mul_f32 v16, v16, v4')
            if job == 0:
                vop(dpp.pop(0))
                if not o['ulate']: vop(urd)
                vop('v_readlane_b32 s60, v28, 63')

            def cexp(p, sc):
                r, i = Z[p]
                if sc:
                    vop(f'v_mul_f32 v{i}, {sc}, v17'); vop(f'v_mul_f32 v{ta}, {sc}, v16')
                    vop(f'v_fract_f32 v{i}, v{i}'); vop(f'v_exp_f32 v{ta}, v{ta}')
                else:
                    vop(f'v_fract_f32 v{i}, v17'); vop(f'v_exp_f32 v{ta}, v16')
                vop(f'v_cos_f32 v{r}, v{i}'); vop(f'v_sin_f32 v{i}, v{i}')
                vop(f'v_mul_f32 v{r}, v{r}, v{ta}'); vop(f'v_mul_f32 v{i}, v{i}, v{ta}')

            def csq(p):
                r, i = Z[p]; R_, I_ = Z[2 * p]
                vop(f'v_mul_f32 v{R_}, v{r}, v{r}')
                if o['omod_']: vop(f'v_mul_f32 v{I_}, v{r}, v{i} mul:2')
                else: vop(f'v_add_f32 v{I_}, v{r}, v{r}'); vop(f'v_mul_f32 v{I_}, v{I_}, v{i}')
                vop(f'v_fma_f32 v{R_}, -v{i}, v{i}, v{R_}')

            def cm(d, z):
                vop(f'v_mul_f32 v{d[0]}, v18, v{z[0]}'); vop(f'v_mul_f32 v{d[1]}, v18, v{z[1]}')
                vop(f'v_fma_f32 v{d[0]}, -v19, v{z[1]}, v{d[0]}'); vop(f'v_fmac_f32 v{d[1]}, v19, v{z[0]}')
            cexp(1, None)
            if job == 0:
                vop('s_lshr_b32 s60, s60, 23\ns_max_u32 s60, s60, 9\ns_sub_u32 s61, s60, 8\ns_lshl_b32 s61, s61, 23\n'
                    's_sub_u32 s60, 262, s60\ns_lshl_b32 s60, s60, 23')
            cexp(16, 's56')
            if job == 0 and not o['ulate']: vop(ust)
            cexp(256, 's58')
            if job == 0 and o['ulate'] == 1: vop(urd)
            for p in (1, 2, 4, 16, 32, 64, 256): csq(p)
            if job == 0 and o['ulate'] == 1: vop(ust)
            vop('v_mul_f32 v18, s60, v18'); vop('v_mul_f32 v19, s60, v19')
            cm(c4, Z[4]); cm(c8, Z[8])
            for j, p in enumerate((1, 2, 16, 32, 64, 512)):
                vop(f'v_cvt_pk_f16_f32 v{MUL(j,0)}, v{Z[p][0]}, v{Z[p][1]}')
            vop(f'v_cvt_pk_f16_f32 v{m128}, v{Z[128][0]}, v{Z[128][1]}')
            vop(f'v_cvt_pk_f16_f32 v{m256}, v{Z[256][0]}, v{Z[256][1]}')
            for j in range(6): vop(f'v_mov_b32 v{MUL(j,1)}, v{MUL(j,0)}')
            S0, S1 = SET(0), SET(1)
            vop(f'v_cvt_pk_f16_f32 v{S0}, 1.0, v{Z[8][0]}'); vop(f'v_cvt_pk_f16_f32 v{S0+8}, 0, v{Z[8][1]}')
            vop(f'v_cvt_pk_f16_f32 v{S0+16}, v18, v{c4[0]}'); vop(f'v_cvt_pk_f16_f32 v{S0+24}, v19, v{c4[1]}')
            vop(f'v_cvt_pk_f16_f32 v{BB(0,0)}, v18, v{c8[0]}'); vop(f'v_cvt_pk_f16_f32 v{BB(1,0)}, v19, v{c8[1]}')
            V.append(('', None, ('TH', 2 * job - 1, 3) if job else None))
            pmul(S1, S1 + 8, S0, S0 + 8, m128)
            pmul(S1 + 16, S1 + 24, S0 + 16, S0 + 24, m256)
            pmul(BB(0, 1), BB(1, 1), BB(0, 0), BB(1, 0), m256)
            if job == 0 and o['ulate'] == 2: vop(urd)
            for j in range(6): vop(f'v_permlane32_swap_b32 v{MUL(j,0)}, v{MUL(j,1)}')
            for c in range(4): vop(f'v_permlane32_swap_b32 v{S0+8*c}, v{S1+8*c}')
            for c in range(2): vop(f'v_permlane32_swap_b32 v{BB(c,0)}, v{BB(c,1)}')
            if job == 0 and o['ulate'] == 2: vop(ust)

        def tmf(T, c, src, sel, half, need, tag):
            d = v(T + 16 * c, 16)
            MQ.append((f'v_mfma_f32_32x32x16_f16 {d}, {v(src+4*half,4)}, {v(sel+4*half,4)}, {"0" if half == 0 else d}', need, tag))

        def lopk(b):
            R_, I_, bb = SET(b % 2), SET(b % 2) + 8, b % 2
            pmul(R_ + 1, I_ + 1, R_, I_, MUL(2, bb))
            for e in range(2): pmul(R_ + 2 + e, I_ + 2 + e, R_ + e, I_ + e, MUL(3, bb), ('lo0', b) if e else None)
            for e in range(4): pmul(R_ + 4 + e, I_ + 4 + e, R_ + e, I_ + e, MUL(4, bb), ('lo1', b) if e == 3 else None)
            for n, (c, half) in enumerate(((0, 0), (1, 0), (0, 1), (1, 1))):
                tmf(TL, c, R_ + 8 * c, SL, half, ('lo%d' % half, b), ('TL', b, n))

        def hipk(b):
            R_, I_, bb = SET(b % 2) + 16, SET(b % 2) + 24, b % 2
            pmul(R_ + 1, I_ + 1, R_, I_, MUL(0, bb))
            pmul(R_ + 2, I_ + 2, R_, I_, MUL(1, bb))
            pmul(R_ + 3, I_ + 3, R_ + 1, I_ + 1, MUL(1, bb), ('hi0', b))
            pmul(R_ + 4, I_ + 4, R_, I_, MUL(5, bb))
            pmul(R_ + 5, I_ + 5, BB(0, bb), BB(1, bb), MUL(5, bb))
            vop(f'v_perm_b32 v{R_+4}, v{R_+4}, v{BB(0,bb)}, s57'); vop(f'v_perm_b32 v{I_+4}, v{I_+4}, v{BB(1,bb)}, s57')
            pmul(R_ + 6, I_ + 6, R_ + 5, I_ + 5, MUL(5, bb))
            pmul(R_ + 7, I_ + 7, R_ + 6, I_ + 6, MUL(5, bb), ('hi1', b))
            for n, (c, half) in enumerate(((0, 0), (1, 0), (0, 1), (1, 1))):
                tmf(TH, c, R_ + 8 * c, SH, half, ('hi%d' % half, b), ('TH', b, n))

        def cvtL(b):
            for e in range(16):
                vop(f'v_cvt_pk_f16_f32 v{PL(b)+e}, v{TL+2*e}, v{TL+2*e+1}', None, ('TL', b, 2 + e // 8))

        def cvtH(b):
            for e in range(16):
                m = '-' if e >= 8 else ''
                vop(f'v_cvt_pk_f16_f32 v{PH+e}, {m}v{TH+2*e}, {m}v{TH+2*e+1}', ('ph', b, e // 4) if e % 4 == 3 else None,
                    ('TH', b, 2 + e // 8))
            for q in range(4):
                c = '0' if (b == 0 and q == 0) else v(AK, 16)
                MQ.append((f'v_mfma_f32_32x32x16_f16 {v(AK,16)}, {v(PH+4*q,4)}, {v(PL(b)+4*q,4)}, {c}', ('ph', b, q), ('F', b, q)))
        UFL = [(1, 1), (2, -1), (2, 0), (2, 1), (3, 0)][o['ufl']]

        def uflag():
            if o['astamp']: vop('s_memtime s[88:89]')
            vop(f's_add_u32 {t0}, {sFl}, {FU}\ns_waitcnt vmcnt(0)\ns_barrier')
            V.append(('@flag', None, None))
            vop('.p2align 3')
        for b in range(4):
            if (b, -1) == UFL: uflag()
            if b % 2 == 0: setup(b // 2)
            if (b, 0) == UFL: uflag()
            if b == 0: V.append(('@pageA1', None, None))
            if b == 2 and o['upos'] == 0: V.append(('@poll', None, None))
            if b == 3 and o['upos'] == 0: V.append(('@ldu', None, None))
            if b % 2 == 0: vop('.p2align 3')
            lopk(b)
            if b: cvtH(b - 1)
            if (b, 1) == UFL: uflag()
            hipk(b)
            if b == 3: V.append(('@pageA2', None, None))
            if b == 2 and o['upos'] == 1: V.append(('@poll', None, None))
            if b == 3 and o['upos'] == 1: V.append(('@ldu', None, None))
            cvtL(b)
        if o['upos'] == 2: V.append(('@poll0', None, None))
        cvtH(3)
        if o['kprio']:
            MQ = [(f's_setprio 3\n{x[0]}\ns_setprio 0', x[1], x[2]) for x in MQ]
            MQ[-1] = (MQ[-1][0] + f'\ns_setprio {o["prioA"]}', MQ[-1][1], MQ[-1][2])
        if o['nokgen']: MQ = [('', x[1], x[2]) for x in MQ]
        done, mdone, since = {}, set(), 99
        for n, (t, d, need_) in enumerate(V):
            while need_ and need_ not in mdone:
                x = MQ.pop(0); assert x[1] in done; a(x[0]); mdone.add(x[2]); since = 0
            if t == '@flag':
                self.stamp(13)
                if o['localY']: a(f's_getreg_b32 s64, hwreg(HW_REG_XCC_ID, 0, 4)\ns_add_u32 s64, s64, {sTag}\ns_add_u32 s64, s64, 1')
                self.flag_store(sW, t0, SWS, sTag, 'v29', 'v30', word1='s64' if o['localY'] else None)
            elif t.startswith('@page'):
                if t == '@pageA1': self.stamp(12)
                self.page(t[5:], 'L_backA')
            elif t == '@poll':
                a(f'buffer_load_dword v7, v6, {SWS}, 0 offen sc1')
            elif t == '@poll0':
                nopoll = self.lab('nopoll')
                a(f's_cmp_lg_u32 {sW}, 0\ns_cbranch_scc1 {nopoll}')
                a(f'buffer_load_dword v7, v6, {SWS}, 0 offen sc1\n{nopoll}:')
            elif t == '@ldu':
                a(f's_lshl_b32 {t1}, {sP}, 13\ns_add_u32 {t1}, {t1}, {UT}\nv_lshlrev_b32 v10, 5, v0')
                a(f's_waitcnt vmcnt(0)\nv_cmp_ne_u32 vcc, {sTag}, v7\ns_cbranch_vccnz L_uwait\nL_uback:')
                a(f'buffer_load_dwordx4 v[20:23], v10, {SWS}, {t1} offen sc1')
                a(f'buffer_load_dwordx4 v[24:27], v10, {SWS}, {t1} offen offset:16 sc1')
                if o['localY']: a(f'buffer_load_dword v7, v6, {SWS}, 0 offen offset:4 sc1')
                a('.p2align 3')
            elif t:
                if not (o['nokgen'] and t.startswith('v_')): a(t)
                if 's_barrier' in t and not done: self.stamp(2)
            if d: done[d] = n
            since += 1
            if o['kyield'] and n % o['kyield'] == 0: a('s_setprio 0')
            if o['kyield'] and (n % o['kyield'] == 2 or n == len(V) - 1): a(f's_setprio {o["prioA"]}')
            if MQ and since >= o['kgap'] and MQ[0][1] in done and n - done[MQ[0][1]] >= 2:
                x = MQ.pop(0); a(x[0]); mdone.add(x[2]); since = 0
        for x in MQ: a(x[0])
        a('v_add_f32 v31, v11, v11\nv_mul_f32 v31, s61, v31')
        a(f's_lshl_b32 {t1}, {sW}, 12\nv_lshl_add_u32 v8, v1, 4, {t1}\nv_xor_b32 v9, 4096, v8')
        a(f's_mul_i32 {t0}, {sCh}, 16640\ns_lshl_b32 {t1}, {sHalf}, 11\ns_add_u32 {t1}, {t1}, {t0}\nv_lshl_add_u32 v12, v1, 4, {t1}')
        for q in range(4):
            for e in range(4 * q, min(15, 4 * q + 4)): a(f'v_mul_f32 v{AK+e}, v31, v{AK+e}')
            a(f'ds_write_b128 v8, {v(AK+4*q,4)} offset:{XCH+1024*q}')
        self.stamp(3)
        if o['upos'] == 2:
            a(f's_lshl_b32 {t1}, {sP}, 13\ns_add_u32 {t1}, {t1}, {UT}\nv_lshlrev_b32 v10, 5, v0')
            a(f's_cmp_lg_u32 {sW}, 0\ns_cbranch_scc1 L_uback')
            a(f's_waitcnt vmcnt(0)\nv_cmp_ne_u32 vcc, {sTag}, v7\ns_cbranch_vccnz L_uwait\nL_uback:')
        a('v_and_b32 v13, 1, v1\nv_cmp_eq_u32 s[62:63], 1, v13')
        a('s_waitcnt lgkmcnt(0)\ns_barrier')
        self.stamp(4)
        if o['upos'] == 2:
            a(f'buffer_load_dwordx4 v[20:23], v10, {SWS}, {t1} offen sc1')
            a(f'buffer_load_dwordx4 v[24:27], v10, {SWS}, {t1} offen offset:16 sc1')
            if o['localY']: a(f'buffer_load_dword v7, v6, {SWS}, 0 offen offset:4 sc1')
        for q in range(4): a(f'ds_read_b128 {v(48+4*q,4)}, v9 offset:{XCH+1024*q}')
        a('v_and_b32 v14, 15, v1\nv_lshrrev_b32 v15, 4, v1')
        a('v_lshlrev_b32 v16, 3, v15\nv_sub_u32 v16, v14, v16\nv_add_u32 v16, 25, v16')
        a('v_sub_u32 v17, 0, v16\nv_and_b32 v17, 3, v17\nv_add_u32 v16, v16, v17')
        a('v_mul_u32_u24 v17, 4160, v17\nv_lshl_add_u32 v16, v16, 1, v17')
        a(f's_lshl_b32 {t1}, {sHalf}, 9\ns_add_u32 {t1}, {t1}, {t0}\nv_add_u32 v2, {t1}, v16')
        a(f's_mul_i32 {t1}, {sCh}, {UTS}\ns_mul_i32 {t2}, {sHalf}, 768\ns_sub_u32 {t1}, {t1}, {t2}\ns_add_u32 {t1}, {t1}, {UTL}')
        a(f'v_mul_u32_u24 v3, 96, v14\nv_lshl_add_u32 v3, v15, 4, v3\nv_add_u32 v3, {t1}, v3')
        a(f's_mul_i32 {t1}, {sW}, 9216\nv_mul_u32_u24 v4, 144, v14\nv_lshl_add_u32 v4, v15, 4, v4\nv_add_u32 v4, {t1}, v4')
        a('v_lshrrev_b32 v5, 3, v0\nv_mul_u32_u24 v5, 144, v5\nv_and_b32 v16, 7, v0\nv_lshl_add_u32 v5, v16, 4, v5')
        E = lambda j: 64 + 6 * j
        B_ = AK + 8

        def link(j, prev):
            for e in range(2):
                if prev is None: a(f'v_mov_b32 v{E(j)+e}, 0')
                else: a(f'v_mov_b32_dpp v{E(j)+e}, v{prev+e} wave_ror:1 row_mask:0xf bank_mask:0xf')
            for e in range(2):
                a(f'v_mov_b32_dpp v{E(j)+e}, v{E(j)+4+e} wave_shr:1 row_mask:0xf bank_mask:0xf')
        a(f's_cmp_eq_u32 {sHalf}, 1\ns_cbranch_scc1 L_x1')
        a('s_mov_b64 exec, 1')
        a(f'v_add_f32 v{AK}, {sDsk}, v{AK}')
        a('s_mov_b64 exec, -1')
        a('s_waitcnt lgkmcnt(1)')
        for e in range(11): a(f'v_add_f32 v{AK+e}, v{AK+e}, v{48+e}')
        for e in range(4): a(f'v_cvt_pk_bf16_f32 v{E(0)+2+e}, v{AK+2*e}, v{AK+2*e+1}')
        for e, (x, y) in enumerate(((0, 0), (0, 1), (1, 1), (2, 2))):
            a(f'v_cvt_pk_bf16_f32 v{E(1)+2+e}, v{B_+x}, v{B_+y}')
        link(0, None)
        a('s_branch L_x2')
        a('L_x1:')
        a('s_waitcnt lgkmcnt(0)')
        for e in range(9, 15): a(f'v_add_f32 v{AK+e}, v{AK+e}, v{48+e}')
        a(f'v_cvt_pk_bf16_f32 v76, v{B_+1}, v{B_+1}\nv_cvt_pk_bf16_f32 v77, v{B_+2}, v{B_+2}')
        for st in range(2):
            a0, a8 = B_ + 3 + 2 * st, B_ + 4 + 2 * st
            r = E(st) + 2
            a(f'v_cndmask_b32 v13, v{a0}, v{a8}, s[62:63]')
            a(f'v_cvt_pk_bf16_f32 v{r}, v{a0}, v{a0}\nv_cvt_pk_bf16_f32 v{r+1}, v{a0}, v{a0}')
            a(f'v_cvt_pk_bf16_f32 v{r+2}, v13, v{a8}\nv_cvt_pk_bf16_f32 v{r+3}, v{a8}, v{a8}')
        link(0, 76)
        a('L_x2:')
        link(1, E(0) + 4)
        for j in range(2):
            r = 80 + 12 * j
            a(f'ds_write_b128 v12, {v(E(j)+2,4)} offset:{KC+64+1024*j}')
            for e in range(4): a(f'v_alignbit_b32 v{r+e}, v{E(j)+e+2}, v{E(j)+e+1}, 16')
            a(f'ds_write_b128 v12, {v(r,4)} offset:{KC+64+1024*j+4160}')
            for e in range(4): a(f'v_mov_b32 v{r+4+e}, v{E(j)+e+1}')
            a(f'ds_write_b128 v12, {v(r+4,4)} offset:{KC+64+1024*j+2*4160}')
            for e in range(4): a(f'v_alignbit_b32 v{r+8+e}, v{E(j)+e+1}, v{E(j)+e}, 16')
            a(f'ds_write_b128 v12, {v(r+8,4)} offset:{KC+64+1024*j+3*4160}')
        a('v_lshrrev_b32 v13, 2, v0\nv_mul_u32_u24 v13, 96, v13\nv_and_b32 v16, 3, v0\nv_lshl_add_u32 v13, v16, 4, v13')
        a(f's_mov_b32 {t1}, 0x05040100\ns_mov_b32 {t2}, 0x07060302')
        if o['astamp']: a('s_memtime s[90:91]')
        a('s_waitcnt vmcnt(0)')
        if o['localY']: a('v_cmp_ne_u32 s[64:65], s64, v7')
        for cch in range(2):
            for k in range(4):
                a(f'v_perm_b32 v{104+4*cch+k}, v{20+6-2*k}, v{20+7-2*k}, {t2 if cch else t1}')
            a(f'ds_write_b128 v13, {v(104+4*cch,4)} offset:{UTL+cch*UTS+15*96}')
        self.page('A3', 'L_backA')
        if o['prioA2'] != o['prioA']: a(f's_setprio {o["prioA2"]}')
        a('s_waitcnt lgkmcnt(0)\ns_barrier')
        self.stamp(5)
        CA = lambda c, bi: 32 + 8 * c + 4 * bi
        FA = lambda b, q, bi: 64 + 48 * b + 8 * q + 4 * bi
        FB = lambda b, c: 64 + 48 * b + 32 + 4 * c

        def creads(k):
            b = k % 2
            L = [f'ds_read_b128 {v(FB(b,q),4)}, v3 offset:{96*(15+16*q-k)}' for q in range(4)]
            for q in range(4):
                for bi in range(2):
                    for h in range(2):
                        L.append(f'ds_read_b64 {v(FA(b,q,bi)+2*h,2)}, v2 offset:{KC+64*k+1024*q+32*bi+8*h}')
            return L
        for x in creads(0): a(x)
        for k in range(8 - o['nconv'], 8):
            if o['sigp'] and k == o['nconv0']:
                if o['localY']:
                    a(f's_lshl_b32 {t1}, {sP}, 13\ns_add_u32 {t1}, {t1}, {YT}\nv_lshrrev_b32 v16, 2, v0\nv_lshlrev_b32 v16, 7, v16')
                    a(f'buffer_load_dword v17, v16, {SWS}, {t1} offen sc1')
                    a(f's_mov_b32 {t1}, {FY-FU}\nbuffer_load_dword v17, v6, {SWS}, {t1} offen sc1')
                nowait = self.lab('nowait')
                a(f's_cmp_lg_u32 {sW}, 0\ns_cbranch_scc1 {nowait}')
                a(f's_lshl_b32 {t1}, s2, 7\ns_add_u32 {t1}, {t1}, {FS}\nv_mov_b32 v16, {t1}')
                self.poll('v7', 'v16', SWS, sTag, sCnt, '1', sleep=3)
                a(f'{nowait}:\ns_waitcnt vmcnt(0)\ns_barrier')
                if o['prioA3'] != o['prioA2']: a(f's_setprio {o["prioA3"]}')
            R = creads(k + 1) if k < 7 else []
            n = 0
            for q in range(4):
                a(f's_waitcnt lgkmcnt({min(15, 12 - 4*q + (n if R else 0))})')
                for c1 in range(4 - q):
                    for bi in range(2):
                        c = '0' if (k == 0 and q == 0) else v(CA(c1 + q, bi), 4)
                        a(f'v_mfma_f32_16x16x32_bf16 {v(CA(c1+q,bi),4)}, {v(FA(k%2,q,bi),4)}, {v(FB(k%2,c1),4)}, {c}')
                        if R: a(R[n])
                        n += 1
        self.stamp(6)
        a(f's_setprio {o["prioA4"]}')
        a('s_barrier')
        for c in range(4):
            for bi in range(2):
                a(f'ds_write_b128 v4, {v(CA(c,bi),4)} offset:{c*2304+bi*64}')
        a(f's_lshl_b32 {t1}, {sP}, 13\ns_add_u32 {t1}, {t1}, {YT}\ns_add_u32 {t2}, {t1}, 4096\nv_lshlrev_b32 v13, 4, v0')
        a('s_waitcnt lgkmcnt(0)\ns_barrier')
        for j in range(2):
            for w4 in range(4):
                a(f'ds_read_b128 {v(64+16*j+4*w4,4)}, v5 offset:{w4*9216+j*4608}')
        for j in range(2):
            r = 64 + 16 * j
            a(f's_waitcnt lgkmcnt({4-4*j})')
            for cch in range(2):
                for e in range(4):
                    a(f'v_add_f32 v{r+8*cch+e}, v{r+8*cch+e}, v{r+8*cch+4+e}')
            for e in range(4): a(f'v_cvt_pk_bf16_f32 v{96+4*j+e}, v{r+e}, v{r+8+e}')
            if not o['localY']: a(f'buffer_store_dwordx4 {v(96+4*j,4)}, v13, {SWS}, {t2 if j else t1} offen sc1')
        if o['localY']:
            a('s_cmp_eq_u64 s[64:65], 0\ns_cbranch_scc1 L_ynear')
            for j in range(2): a(f'buffer_store_dwordx4 {v(96+4*j,4)}, v13, {SWS}, {t2 if j else t1} offen sc1')
            a('s_branch L_ydone\nL_ynear:')
            for j in range(2): a(f'buffer_store_dwordx4 {v(96+4*j,4)}, v13, {SWS}, {t2 if j else t1} offen')
            a('L_ydone:')
        a(f'v_add_u32 v6, {FY-FU}, v6')
        a(f's_lshl_b32 {t1}, {sW}, 1\nv_xor_b32 v14, {t1}, v14\nv_lshlrev_b32 v14, 4, v14')
        a(f'v_lshl_add_u32 v2, v15, 13, v14\nv_xor_b32 v3, 16, v2\nv_add_u32 v3, {4*8192-1024}, v3')
        a(f's_lshl_b32 {t1}, {sW}, 2\nv_lshrrev_b32 v16, 5, v1\nv_add_u32 v16, {t1}, v16\nv_and_b32 v17, 7, v1')
        a('v_xor_b32 v16, v16, v17\nv_lshlrev_b32 v16, 4, v16\nv_lshl_add_u32 v16, v17, 10, v16')
        a('v_bfe_u32 v18, v1, 3, 2\nv_lshl_add_u32 v4, v18, 2, v16\nv_xor_b32 v5, 32, v4')
        a('v_lshrrev_b32 v18, 3, v1\nv_mul_u32_u24 v8, 1792, v18\nv_lshl_add_u32 v8, v17, 4, v8')
        a(f's_add_u32 {t0}, {sFl}, {FY}')
        a('s_waitcnt vmcnt(0)\ns_barrier')
        self.flag_store(sW, t0, SWS, sTag, 'v29', 'v30', near='s[64:65]' if o['localY'] else None)
        self.stamp(7)
        a(f's_lshl_b32 {t0}, {sR}, 2\ns_add_u32 {t0}, {t0}, {sW}\ns_mul_i32 {t0}, {t0}, {16*1792}')
        a(f's_lshl_b32 {t1}, {sG}, 7\ns_add_u32 {t0}, {t0}, {t1}\ns_add_u32 {t2}, {t0}, {8*1792}')
        a(f's_add_u32 {t3}, {t3}, {YT}\ns_lshl_b32 {t1}, {sW}, 11')
        a(f's_add_u32 m0, {t1}, {TILE}')
        if o['atouch']: a(f'v_mov_b32 v19, 0\nbuffer_load_dword v19, v19, {SOUT}, {t0} offen')
        nopoll = self.lab('nopoll')
        a(f's_cmp_lg_u32 {sW}, 0\ns_cbranch_scc1 {nopoll}')
        if not o['localY']: a('s_waitcnt vmcnt(0)')
        self.poll('v7', 'v6', SWS, sTag, sCnt, '-1', sleep=o['ysleep'] or 24, lazy=bool(o['ysleep']))
        a(f'{nopoll}:')
        a('s_barrier')
        a(f'buffer_load_dwordx4 v2, {SWS}, {t3} offen sc1 lds')
        a(f'buffer_load_dwordx4 v3, {SWS}, {t3} offen offset:1024 sc1 lds')
        a('s_waitcnt vmcnt(0)\ns_barrier')
        self.stamp(8)
        for j in range(2):
            for e in range(4):
                a(f'ds_read_b32 v{20+4*j+e}, v{4+j} offset:{TILE+e*256}')
        a('s_waitcnt lgkmcnt(4)')
        a(f'buffer_store_dwordx4 v[20:23], v8, {SOUT}, {t0} offen' + ' sc1' * (o['outsc'] & 1))
        a('s_waitcnt lgkmcnt(0)')
        a(f'buffer_store_dwordx4 v[24:27], v8, {SOUT}, {t2} offen' + ' sc1' * (o['outsc'] & 1))
        self.stamp(9)
        self.dump_stamps(SWS, sW)
        a('s_endpgm')
        if o['mon']:
            a('L_mon:\ns_cmp_lg_u32 s2, 1\ns_cbranch_scc1 L_exit\ns_cmp_lg_u32 s36, 0\ns_cbranch_scc1 L_exit')
            a('s_waitcnt lgkmcnt(0)\ns_mov_b32 s40, 0\ns_memrealtime s[44:45]\ns_waitcnt lgkmcnt(0)')
            a('L_mon1:\ns_memtime s[46:47]\ns_memrealtime s[48:49]\ns_waitcnt lgkmcnt(0)')
            a('s_sub_u32 s50, s48, s44\ns_cmp_lt_i32 s50, 0\ns_cbranch_scc1 L_mon1')
            a('s_mov_b32 m0, s40\nv_writelane_b32 v8, s46, m0\nv_writelane_b32 v9, s48, m0\ns_add_u32 s44, s44, 25')
            a('s_add_u32 s40, s40, 1\ns_cmp_lt_u32 s40, 64\ns_cbranch_scc1 L_mon1')
            self.srd(4, 28, WS_SIZE)
            a('v_lshlrev_b32 v2, 3, v1\nv_add_u32 v2, 0x4a000, v2\nbuffer_store_dwordx2 v[8:9], v2, s[4:7], 0 offen\ns_endpgm')
        a('L_idle:')
        a(f's_lshl_b32 {t0}, {sR}, 1\ns_add_u32 {t0}, {t0}, {sG}\ns_lshl_b32 {t0}, {t0}, 2\ns_add_u32 {t0}, {t0}, {sW}')
        a(f's_mul_i32 {t0}, {t0}, 3200\nv_min_u32 v2, 24, v1\nv_lshl_add_u32 v2, v2, 7, {t0}\ns_waitcnt lgkmcnt(0)')
        self.srd(4, 22, 448 * 896)
        a('buffer_load_dword v3, v2, s[4:7], 0 offen')
        self.tlb_warm()
        a('s_branch L_mon' if o['mon'] else 's_endpgm')
        a('L_uwait:')
        self.poll('v7', 'v6', SWS, sTag, sCnt, '-1', sleep=8)
        a('s_branch L_uback')

    def build(self):
        a = self.a
        a('s_load_dwordx16 s[4:19], s[0:1], 0')
        a('s_load_dwordx8 s[20:27], s[0:1], 64')
        a('s_load_dwordx2 s[28:29], s[0:1], 96')
        a('s_cmp_lt_u32 s2, 256\ns_cbranch_scc1 L_roleA')
        a('s_cmp_ge_u32 s2, 512\ns_cbranch_scc1 L_exit')
        self.B_prologue()
        a('L_exit:\ns_endpgm')
        a('L_roleA:')
        self.A_prologue()
        if self.o['aexit'] == 1: a('s_endpgm')
        n0 = len(a.L)
        self.role_A()
        if self.o['amem'] != 7:
            from asmlib import Ins
            half = [i for i in range(n0, len(a.L)) if a.L[i].mn.startswith('v_mfma_f32_16x16')][0]
            for i in range(n0, len(a.L)):
                x = a.L[i]
                bit = 4 if 's[8:11]' in x.text else (1 if i < half else 2)
                if self.o['amem'] & bit: continue
                if x.mn.startswith('buffer_'): a.L[i] = Ins('s_nop 0')
                if x.mn.startswith('v_cmp_ne_u32') and 's40' in x.text: a.L[i] = Ins('s_mov_b64 vcc, 0')
        self.role_B()
        a('L_codeend:')
        body = a.text()
        hdr = HEADER
        if self.o['stamps']: hdr = f'; swap=1 rt={self.o["rt"]}\n' + hdr
        return (hdr + '.amdgcn_target "amdgcn-amd-amdhsa--gfx950"\n.text\n'
                f'.globl {NAME}_kernel\n.p2align 12\n.p2align 8\n.type {NAME}_kernel,@function\n{NAME}_kernel:\n'
                + body +
                f""".section .rodata,"a"
.p2align 6
.amdhsa_kernel {NAME}_kernel
  .amdhsa_next_free_vgpr 256
  .amdhsa_next_free_sgpr 102
  .amdhsa_accum_offset 256
  .amdhsa_group_segment_fixed_size 0
  .amdhsa_kernarg_size 104
  .amdhsa_user_sgpr_count 2
  .amdhsa_user_sgpr_kernarg_segment_ptr 1
  .amdhsa_system_sgpr_workgroup_id_x 1
.end_amdhsa_kernel
""")


if __name__ == '__main__':
    opt = {}
    out = f'cdna_kernels/{NAME}.s'
    for x in sys.argv[1:]:
        k, val = x.split('=')
        if k == 'out': out = val
        else: opt[k] = int(val)
    g = Gen(**opt)
    open(out, 'w').write(g.build())
    print('wrote', out, 'nops added', g.a.nops_added)
```

```python
import sys, struct, math
from asmlib import Asm, v, s

NAME = 'concat_heads__ssm_conv_s4d__softmax_full_mha__prompt'

EPOCH = 0
FKV = 0x1000
FO = 0x9000
FU = 0x11000
FY = 0x19000
ONES = 0x21000
FS = 0x41000
STAMP = 0x50000
KWS = 0x90000
VWS = KWS + 28672
OWS = KWS + 2 * 28672
UT = 0x620000
YT = 0x801000
WS_SIZE = 0xA00000
KT_STRIDE = 90240
SPIN = 40000


def f2u(x):
    return struct.unpack('<I', struct.pack('<f', x))[0]


def hx(x):
    return f'0x{x & 0xffffffff:08x}'


HEADER = """; Kernarg layout for this problem (104 bytes, ptrs only, base s[0:1]):
;   offset  80: d_out     shape=(1, 2048, 896) dtype=bfloat16
;    otherwise the tile is recomputed with the true row maximum subtracted (L_slow); o -> publish; out projection.
; @launch grid=(512,1,1) block=(256,1,1) lds=81920
"""


class Gen:
    def __init__(self, **opt):
        self.o = dict(stamps=0, rt=0, rot=2, prioA=2, prioB=1, prioA2=0, codepf=1, pshr=0, pn=2, pgap=0, lay=1, afirst=2, nodummy=1, mix=0, fp=10, ufl=0, mwarm=0, stalepad=0, fullout=0, kgap=6, kyield=0, prioB0=-1, prioB1=3, kB1=27, omod_=1, ulate=1, padS=-1, ysleep=48, wo0=18, wostep=8, tlbw=0, pfd=9, lz2=15, otouch=0, atouch=0, lzp=0, lz=4, mon=0, prioA0=0, ufirst=0, amem=7, aexit=0, noA=0, nconv=8, nokgen=0, onesc=0, sigp=0, nconv0=0, localY=0, prioA3=0, ldsh=1, opre=1, attst=0, noload=0, omod=0, nwo=9, fullflag=1, force_slow=0, wsrot=0, hpx=8,
                      pollpos=8, npre=0, nearly=4, nmid=3, local=0, outsc=3, kprio=0, q1=20, og=16, opoll=0, oflag=62, opre_=0, oat=1, oown=1, force_retry=0, prioA4=3, upos=2, tlb=1, wowarm=2, delayB=0, nowait=0, astamp=0, prioB2=1)
        self.o.update(opt)
        self.a = Asm()
        self.nlab = 0

    def lab(self, base):
        self.nlab += 1
        return f'L_{base}_{self.nlab}'

    def stamp(self, i):
        if self.o['attst'] == 2 and i >= 10: return
        if self.o['stamps'] == 2:
            if i == 0: self.a('s_memrealtime s[100:101]')
            return
        if self.o['stamps'] and self.o['rt'] == 2:
            m = {0: 0, 2: 1, 3: 2, 5: 3, 8: 4, 9: 5, 12: 6}
            if i in m: self.a(f's_memtime s[{68+4*m[i]}:{69+4*m[i]}]\ns_memrealtime s[{70+4*m[i]}:{71+4*m[i]}]')
            if i == 0: self.a('s_memrealtime s[100:101]')
            if i == 14: self.a('s_memtime s[96:97]')
        elif self.o['stamps']:
            self.a(f'{"s_memrealtime" if self.o["rt"] else "s_memtime"} s[{68+2*i}:{69+2*i}]')
            if i == 0: self.a('s_memrealtime s[100:101]')

    def page(self, name, back, fall=True):
        a = self.a
        if fall: a(f's_branch L_pg_{name}')
        a('.p2align 12')
        a(f'L_stub_{name}:')
        if isinstance(back, dict):
            for k, b in back.items():
                a(f'L_stub_{name}{k}:')
                a.raw(f's_branch {b}')
        elif back:
            a.raw(f's_branch {back}')
            a.raw('s_nop 0')
        a(f'L_pg_{name}:')

    def touch(self, swave, targets, back):
        a = self.a
        for w, name in targets.items():
            a(f's_cmp_eq_u32 {swave}, {w}\ns_cbranch_scc1 L_stub_{name}')
        a(f'{back}:')

    def dump_stamps(self, srd, swave):
        if not self.o['stamps']:
            return
        a = self.a
        a('s_memrealtime s[98:99]')
        a('s_waitcnt lgkmcnt(0)')
        a(f's_lshl_b32 s3, s2, 2\ns_add_u32 s3, s3, {swave}\ns_lshl_b32 s3, s3, 7\ns_add_u32 s3, s3, {STAMP}')
        a('s_mov_b64 exec, 1\nv_mov_b32 v1, 0')
        for i in range(15 if self.o['stamps'] == 2 else 0, 17):
            a(f'v_mov_b32 v2, s{68+2*i}')
            a(f'buffer_store_dword v2, v1, {srd}, s3 offen offset:{4*i}')
        a('s_mov_b64 exec, -1')

    def srd(self, d, b, size):
        self.a(f's_mov_b32 s{d}, s{b}\ns_mov_b32 s{d+1}, s{b+1}\ns_mov_b32 s{d+2}, {size}\ns_mov_b32 s{d+3}, 0x00020000')

    def poll(self, vdst, vaddr, srd, stag, scnt, mask, first_issued=False, sleep=4, atomic=False, lazy=False):
        a = self.a
        lp = self.lab('poll'); dn = self.lab('polldone'); chk = self.lab('pollchk')
        a(f's_mov_b32 {scnt}, {SPIN}')
        self.setexec(mask)
        if first_issued:
            a(f's_branch {chk}')
        a(f'{lp}:')
        if lazy: a(f's_sleep {sleep}')
        if atomic: a(f'v_mov_b32 {vdst}, 0\nbuffer_atomic_or {vdst}, {vaddr}, {srd}, 0 offen sc0')
        else: a(f'buffer_load_dword {vdst}, {vaddr}, {srd}, 0 offen sc1')
        a(f'{chk}:')
        a('s_waitcnt vmcnt(0)')
        a(f'v_cmp_ne_u32 vcc, {stag}, {vdst}')
        a(f's_sub_u32 {scnt}, {scnt}, 1')
        a(f's_cbranch_vccz {dn}')
        a(f's_cbranch_scc1 {dn}')
        if not lazy: a(f's_sleep {sleep}')
        a(f's_branch {lp}')
        a(f'{dn}:')
        a('s_mov_b64 exec, -1')

    def poll2(self, regs, vaddr, srd, stag, scnt, mask):
        a = self.a; o = self.o
        n = len(regs)
        lp = self.lab('poll'); dn = self.lab('polldone')
        a(f's_mov_b32 {scnt}, {SPIN}')
        self.setexec(mask)
        iss = lambda x: a(f'v_mov_b32 {x}, 0\nbuffer_atomic_or {x}, {vaddr}, {srd}, 0 offen sc0')
        if n > 2:
            a(f's_waitcnt vmcnt(0)\nv_cmp_ne_u32 vcc, {stag}, {regs[0]}\ns_cbranch_vccz {dn}\ns_mov_b64 exec, vcc')
            for x in regs[:n - 1]:
                iss(x); a(f's_sleep {o["pgap"]}')
        a(f'{lp}:')
        for i in range(n):
            iss(regs[(i + n - 1) % n])
            a(f's_waitcnt vmcnt({n-1})\nv_cmp_ne_u32 vcc, {stag}, {regs[i]}\ns_cbranch_vccz {dn}')
            if o['pshr']: a('s_mov_b64 exec, vcc')
        a(f's_sub_u32 {scnt}, {scnt}, 1\ns_cbranch_scc0 {lp}')
        a(f'{dn}:')
        a('s_mov_b64 exec, -1')

    def setexec(self, mask):
        if mask == 'lo32':
            self.a('s_mov_b32 exec_hi, 0')
        else:
            self.a(f's_mov_b64 exec, {mask}')

    def flag_store(self, swave, soff, srd, stag, vt0, vt1, drain=False, near=None, word1=None):
        a = self.a
        sk = self.lab('noflag')
        a(f's_cmp_lg_u32 {swave}, 0\ns_cbranch_scc1 {sk}')
        a(f'v_lshlrev_b32 {vt0}, 2, v1\nv_mov_b32 {vt1}, {stag}')
        if word1: a(f'v_writelane_b32 {vt1}, {word1}, 1')
        self.setexec('lo32' if self.o['fullflag'] else '1')
        if near:
            l1, l2 = self.lab('far'), self.lab('near')
            a(f's_cmp_eq_u64 {near}, 0\ns_cbranch_scc0 {l1}')
            a(f'buffer_store_dword {vt1}, {vt0}, {srd}, {soff} offen\ns_branch {l2}\n{l1}:')
        a(f'buffer_store_dword {vt1}, {vt0}, {srd}, {soff} offen sc1')
        if near: a(f'{l2}:')
        a('s_mov_b64 exec, -1')
        if drain:
            j = self.lab('flagjoin')
            a(f's_waitcnt vmcnt(1)\ns_branch {j}\n{sk}:\ns_waitcnt vmcnt(0)\n{j}:')
        else:
            a(f'{sk}:')

    def ws_srd(self, d, stag, tmp):
        a = self.a
        if self.o['wsrot']:
            a(f's_and_b32 {tmp}, {stag}, 15\ns_mul_i32 {tmp}, {tmp}, 0xc00000\ns_add_u32 s{d}, s28, {tmp}\ns_addc_u32 s{d+1}, s29, 0')
            a(f's_mov_b32 s{d+2}, {WS_SIZE}\ns_mov_b32 s{d+3}, 0x00020000')
        else:
            self.srd(d, 28, WS_SIZE)

    def B_regs(self):
        self.SX, self.SW, self.SWS, self.SWO, self.SOUT = 's[4:7]', 's[8:11]', 's[12:15]', 's[32:35]', 's[36:39]'
        self.sx = [f's{42+p}' for p in range(7)]
        self.sw = [f's{49+p}' for p in range(7)]

    def B_dma(self, p):
        L = [f's_add_u32 m0, s57, {(p % 4) * 8192}']
        for q in range(2):
            L.append(f'buffer_load_dwordx4 v{6+q}, {self.SW}, {self.sw[p]} offen offset:{1024*q} lds')
        L.append(f's_add_u32 m0, s56, {(p % 3) * 16384}')
        for q in range(4):
            L.append(f'buffer_load_dwordx4 v{2+q}, {self.SX}, {self.sx[p]} offen offset:{1024*q} lds')
        return L

    def B_prologue(self):
        a = self.a; o = self.o
        self.B_regs()
        sx, sw = self.sx, self.sw
        sW, sH, sT, sJ, sV, sTag = 's16', 's17', 's30', 's31', 's40', 's41'
        sM4, sM2, sK = 's56', 's57', 's59'
        t0, t1, t2, t3, sDq = 's61', 's62', 's63', 's64', 's65'
        WQ = 49152
        a('L_roleB:')
        if o['padS'] >= 0: a('s_memrealtime s[100:101]')
        self.stamp(0)
        a(f's_setprio {o["prioB0"] if o["prioB0"] >= 0 else o["prioB"]}')
        a('v_lshrrev_b32 v2, 6, v0\nv_and_b32 v1, 63, v0')
        a(f'v_readfirstlane_b32 s58, v2')
        a(f's_and_b32 {t0}, s2, 7\ns_bfe_u32 {sJ}, s2, 0x30003')
        if o['hpx'] == 8:
            a(f's_and_b32 {sV}, {t0}, 1\ns_bfe_u32 {t1}, s2, 0x20006')
            a(f's_and_b32 {sT}, {t0}, 6\ns_lshl_b32 {sT}, {sT}, 1\ns_add_u32 {sT}, {sT}, {t1}')
            a(f's_mul_i32 {t3}, {sV}, 3\ns_add_u32 {t3}, {t3}, {t1}')
            if o['mix']:
                a(f's_lshl_b32 s42, {t1}, 1\ns_and_b32 s43, {t1}, 1\ns_lshr_b32 s44, {t1}, 1\ns_lshl_b32 s45, {sV}, 1\ns_add_u32 s44, s44, s45')
                a(f's_cmp_lt_u32 {t0}, 2\ns_cselect_b32 {t3}, s42, {t3}\ns_cselect_b32 {sV}, s43, {sV}\ns_cselect_b32 {sT}, s44, {sT}')
            a(f's_lshl_b32 {t1}, {t1}, 1')
        else:
            a(f's_bfe_u32 {sV}, s2, 0x10006\ns_bfe_u32 {t1}, s2, 0x10007')
            a(f's_lshl_b32 {sT}, {t0}, 1\ns_add_u32 {sT}, {sT}, {t1}')
            a(f's_bfe_u32 {t3}, s2, 0x20006\ns_lshl_b32 {t3}, {t3}, 1')
            a(f's_lshl_b32 {t1}, {t1}, 2')
        a(f's_mul_i32 {t2}, {sV}, 7\ns_add_u32 {t2}, {t2}, {sJ}\ns_add_u32 {t2}, {t2}, 7')
        a(f's_cmp_eq_u32 {sJ}, 7\ns_cselect_b32 {t2}, {"0x100000" if o["nodummy"] else t3}, {t2}\ns_lshl_b32 {sDq}, {t2}, 7')
        a(f's_mul_i32 {t3}, s58, {16*2688}\ns_add_u32 {t2}, {sDq}, {t3}')
        a(f's_lshl_b32 {t0}, {sT}, 2\ns_add_u32 {t0}, {t0}, s58\ns_mul_i32 {t0}, {t0}, 28672')
        if o['rot'] == 2:
            if o['hpx'] == 8: a(f's_and_b32 {t1}, s2, 6\ns_bitcmp1_b32 s2, 0\ns_cselect_b32 {t3}, 3, 0\ns_add_u32 {t1}, {t1}, {t3}')
            else: a(f's_and_b32 {t1}, s2, 7')
            a(f's_cmp_ge_u32 {t1}, 7\ns_cselect_b32 {t3}, 7, 0\ns_sub_u32 {t1}, {t1}, {t3}')
        elif o['rot']:
            a(f's_add_u32 {t1}, {t1}, {sJ}')
            a(f's_cmp_ge_u32 {t1}, 7\ns_cselect_b32 {t3}, 7, 0\ns_sub_u32 {t1}, {t1}, {t3}')
        else:
            a(f's_mov_b32 {t1}, 0')

        def offs(p):
            if p: a(f's_add_u32 {t1}, {t1}, 1\ns_cmp_eq_u32 {t1}, 7\ns_cselect_b32 {t1}, 0, {t1}')
            a(f's_lshl_b32 {sx[p]}, {t1}, 7\ns_add_u32 {sx[p]}, {sx[p]}, {t0}')
            a(f's_mul_i32 {sw[p]}, {t1}, {64*2688}\ns_add_u32 {sw[p]}, {sw[p]}, {t2}')
        offs(0)
        a(f's_lshl_b32 {sM4}, s58, 12\ns_lshl_b32 {sM2}, s58, 11\ns_add_u32 {sM2}, {sM2}, 49152')
        a('v_lshrrev_b32 v17, 3, v1\nv_and_b32 v18, 7, v1\nv_lshrrev_b32 v19, 4, v1')
        a('v_xor_b32 v20, v18, v19\nv_lshlrev_b32 v20, 4, v20')
        a('v_mul_u32_u24 v2, 896, v17\nv_xor_b32 v21, 64, v20')
        a(f'v_add_u32 v3, {7168-1024}, v2\nv_add_u32 v3, v3, v21\nv_add_u32 v2, v2, v20')
        a(f'v_add_u32 v4, {2*(7168-1024)}, v2\nv_add_u32 v5, {2*(7168-1024)}, v3')
        a('v_and_b32 v20, 1, v19\nv_lshlrev_b32 v20, 2, v20\nv_xor_b32 v20, v18, v20\nv_lshlrev_b32 v20, 4, v20')
        a(f'v_mul_u32_u24 v6, 2688, v17\nv_add_u32 v6, v6, v20\nv_add_u32 v7, {8*2688-1024}, v6')
        a('s_waitcnt lgkmcnt(0)')
        if o['delayB']: a('s_sleep 127\ns_sleep 127')
        self.srd(4, 18, 2048 * 896)
        self.srd(8, 20, 448 * 2688)
        for x in self.B_dma(0): a(x)
        offs(1)
        D1 = self.B_dma(1)
        for x in D1[:o['npre']]: a(x)
        self.B_offs, self.B_D1 = offs, D1[o['npre']:]
        if o['lay'] == 1: self.B_setup()
        else: a('s_branch L_Bsetup')

    def B_setup(self):
        a = self.a; o = self.o
        offs = self.B_offs
        sW, sH, sT, sJ, sV, sTag = 's16', 's17', 's30', 's31', 's40', 's41'
        sM4, sM2, sK = 's56', 's57', 's59'
        t0, t1, t2, t3, sDq = 's61', 's62', 's63', 's64', 's65'
        a(f's_load_dword {sTag}, s[28:29], {EPOCH}')
        a(f's_mov_b32 {sW}, s58')
        for p in range(2, 7): offs(p)
        a(f's_lshl_b32 {sH}, {sV}, 3\ns_add_u32 {sH}, {sH}, {sJ}')
        a(f's_mul_i32 {sK}, {sH}, 7\ns_lshr_b32 {sK}, {sK}, 1\ns_lshl_b32 {sK}, {sK}, 4')
        a(f's_sub_u32 {sDq}, {sK}, {sDq}')
        self.srd(32, 22, 448 * 896)
        self.srd(36, 24, 2048 * 1792)
        a('v_and_b32 v17, 31, v1\nv_lshrrev_b32 v18, 5, v1')
        a('v_bfe_u32 v19, v17, 1, 3\nv_xor_b32 v19, v19, v18\nv_lshlrev_b32 v19, 4, v19')
        a(f'v_lshl_add_u32 v20, v17, 7, {sM4}')
        for ss in range(4):
            a(f'v_xor_b32 v21, {32*ss}, v19\nv_add_u32 v{8+ss}, v20, v21')
        a('v_bfe_u32 v19, v1, 2, 2\nv_lshl_add_u32 v20, v18, 3, v19')
        a('v_and_b32 v21, 3, v1\nv_bfe_u32 v22, v1, 4, 1\nv_lshl_add_u32 v21, v22, 2, v21')
        a('v_and_b32 v22, 1, v1\nv_bfe_u32 v23, v1, 1, 1\nv_lshl_add_u32 v22, v22, 1, v23')
        a('v_and_b32 v23, 4, v21\nv_add_u32 v22, v22, v23')
        a(f'v_lshlrev_b32 v15, 6, v20\nv_lshl_add_u32 v15, v22, 3, v15')
        a(f's_cmp_eq_u32 {sV}, 1\ns_cselect_b64 vcc, -1, 0')
        a('v_cndmask_b32 v21, v22, v21, vcc')
        a('v_lshrrev_b32 v19, 1, v19\nv_lshlrev_b32 v19, 6, v19')
        a('v_lshlrev_b32 v21, 3, v21\nv_lshlrev_b32 v20, 7, v20\nv_add_u32 v20, 49152, v20')
        a('v_xor_b32 v12, v21, v19\nv_xor_b32 v13, 64, v12\nv_add_u32 v12, v12, v20\nv_add_u32 v13, v13, v20')
        a('v_lshrrev_b32 v19, 2, v1\nv_and_b32 v20, 3, v1\nv_mul_u32_u24 v14, 2688, v19\nv_lshl_add_u32 v14, v20, 4, v14')
        a('v_and_b32 v19, 0x13, v17\nv_bfe_u32 v20, v17, 2, 1\nv_lshl_or_b32 v19, v20, 3, v19')
        a('v_bfe_u32 v20, v17, 3, 1\nv_lshl_or_b32 v19, v20, 2, v19')
        a('v_lshlrev_b32 v19, 4, v19\nv_lshl_add_u32 v19, v18, 9, v19')
        a('v_mul_u32_u24 v20, 7168, v18\nv_lshl_add_u32 v20, v17, 4, v20')
        a('v_cndmask_b32 v16, v19, v20, vcc')
        a(f's_lshl_b32 {t1}, {sJ}, 12\ns_add_u32 {t1}, {t1}, {KWS}\ns_lshl_b32 {t2}, {sJ}, 10\ns_add_u32 {t2}, {t2}, {VWS}')
        a(f's_lshl_b32 {t0}, {sT}, 2\ns_add_u32 {t0}, {t0}, {sW}\ns_mul_i32 {t0}, {t0}, {KT_STRIDE}')
        a(f's_lshl_b32 s66, {sH}, 11\ns_add_u32 s66, s66, {t0}\ns_add_u32 s66, s66, {OWS}')
        a(f's_cmp_eq_u32 {sV}, 1\ns_cselect_b32 {t1}, {t2}, {t1}\ns_add_u32 {t0}, {t0}, {t1}')
        a(f's_cmp_eq_u32 {sJ}, 7\ns_cselect_b32 {t0}, {WS_SIZE}, {t0}\ns_add_u32 {t1}, {t0}, 14336')
        a(f's_lshl_b32 {t2}, {sW}, 10')
        u0, u1 = 's18', 's19'
        a(f's_lshl_b32 {u0}, {sK}, 5\nv_lshlrev_b32 v250, 4, v1\nv_add_u32 v19, {u0}, v250')
        a(f's_and_b32 {u0}, s2, 63\ns_lshl_b32 {u0}, {u0}, 7\ns_bfe_u32 {u1}, s2, 0x20006\ns_lshl_b32 {u1}, {u1}, 15')
        a(f's_add_u32 {u0}, {u0}, {u1}\ns_add_u32 {u0}, {u0}, {ONES}\nv_mov_b32 v204, {u0}')
        a('v_and_b32 v203, 1, v1\nv_mul_u32_u24 v203, 14336, v203\nv_add_u32 v203, v204, v203')
        for e in range(4): a(f'v_mov_b32 v{208+e}, 0x3f803f80\nv_mov_b32 v{212+e}, 0')
        a(f's_mul_i32 {u0}, {sH}, 448\ns_add_u32 {u0}, {u0}, {VWS}')
        a('v_bfe_u32 v205, v17, 3, 1\nv_and_b32 v206, 3, v17\nv_lshl_add_u32 v205, v205, 2, v206')
        a('v_cmp_gt_u32 vcc, 16, v17\nv_cmp_ne_u32 s[26:27], 7, v205')
        a('v_bfe_u32 v206, v17, 2, 1\nv_mad_u32_u24 v205, v206, 7, v205\nv_lshrrev_b32 v206, 4, v17\nv_mad_u32_u24 v205, v206, 14, v205')
        a(f'v_mul_u32_u24 v251, 7168, v18\nv_lshl_add_u32 v251, v205, 4, v251\nv_add_u32 v251, {u0}, v251')
        a(f'v_mov_b32 v206, {WS_SIZE}\nv_cndmask_b32 v204, v206, v204, vcc\nv_mov_b32 v22, {KT_STRIDE}')
        a('v_cndmask_b32 v251, v204, v251, s[26:27]\nv_cndmask_b32 v22, 0, v22, s[26:27]')
        a(f's_lshl_b32 {u0}, {sW}, 1\nv_mad_u32_u24 v20, v22, {u0}, v251')
        a(f's_mul_i32 {u0}, {sH}, 28\ns_lshr_b32 {u1}, {u0}, 6\ns_add_u32 {u0}, {u0}, 27\ns_lshr_b32 {u0}, {u0}, 6')
        a(f's_sub_u32 {u0}, {u0}, {u1}\ns_add_u32 {u1}, {u1}, {FKV//128}')
        a(f'v_and_b32 v207, {u0}, v1\nv_and_b32 v205, 2, v1\nv_lshl_add_u32 v207, v205, 2, v207\nv_add_lshl_u32 v207, v207, {u1}, 7')
        a(f's_and_b32 s67, {sT}, 12\ns_max_u32 s67, s67, 2\ns_lshl_b32 {u0}, s67, 11')
        a('v_and_b32 v205, 60, v1\nv_lshl_add_u32 v248, v205, 9, v207')
        a(f'v_and_b32 v205, 12, v1\nv_lshl_add_u32 v249, v205, 9, v207\nv_add_u32 v249, {u0}, v249')
        a(f's_lshr_b32 {u0}, {sW}, 1\nv_lshl_add_u32 v207, {u0}, 11, v207')
        a(f's_lshl_b32 {u0}, {sT}, 4\ns_add_u32 {u0}, {u0}, {sH}\ns_lshl_b32 s60, {u0}, 7\ns_add_u32 {u0}, s60, {FKV}')
        a(f's_cmp_eq_u32 {sW}, 0\ns_cselect_b32 {u0}, {u0}, {WS_SIZE}\nv_lshl_add_u32 v23, v17, 2, {u0}')
        cq = f2u(28 ** -0.5 * math.log2(math.e))
        a(f's_and_b32 {u0}, {sH}, 1\nv_mov_b32 v200, {hx(cq)}')
        a(f'v_cmp_gt_u32 vcc, {u0}, v18\nv_cmp_lt_u32 s[26:27], {u0}, v18')
        a(f'v_add_u32 v255, {sM4}, v250')
        for i in range(3): a(f'v_add_u32 v{252+i}, {4096*(i+1)}, v255\nv_and_b32 v{252+i}, 0x3fff, v{252+i}')
        a('v_cndmask_b32 v201, v200, 0, vcc\nv_cndmask_b32 v202, v200, 0, s[26:27]')
        a('v_lshrrev_b32 v21, 3, v1\nv_and_b32 v205, 7, v1\nv_bfe_u32 v206, v1, 4, 1')
        a('v_lshlrev_b32 v206, 2, v206\nv_xor_b32 v205, v205, v206\nv_mul_u32_u24 v21, 896, v21\nv_lshl_add_u32 v21, v205, 4, v21')
        a(f's_lshl_b32 {u0}, {sJ}, 7\ns_mul_i32 {u1}, {sW}, 7168\ns_add_u32 {u0}, {u0}, {u1}\nv_add_u32 v21, {u0}, v21\ns_mov_b32 s34, 28672')
        a(f's_cmp_lt_u32 {sT}, 2\ns_cselect_b32 s19, {WS_SIZE}, 0')
        a(f's_mul_i32 s18, {sW}, {2*KT_STRIDE}\ns_add_u32 s18, s18, {KWS}')
        self.touch(sW, {w: 'B%d' % (1 + w) for w in range(1, 4)}, 'L_backB')
        self.stamp(1)
        a(f's_cmp_eq_u32 {sV}, 1\ns_cbranch_scc1 L_pg_B1V\ns_branch L_pg_B1K')

    def role_B(self):
        a = self.a; o = self.o
        SX, SW, SWS, SWO, SOUT = self.SX, self.SW, self.SWS, self.SWO, self.SOUT
        sx, sw = self.sx, self.sw
        sW, sH, sT, sJ, sV, sTag = 's16', 's17', 's30', 's31', 's40', 's41'
        sM4, sM2, sCnt, sK, sC14 = 's56', 's57', 's58', 's59', 's60'
        t0, t1, t2, t3, sDq = 's61', 's62', 's63', 's64', 's65'
        slot = lambda p: ((p + 1) % 3) * 24576
        QX, RED, WO = 49152, 0, 23552
        X = lambda k: 24 + 4 * k
        ACC = [136, 152]
        WF = lambda k, n: 168 + 8 * (k % 4) + 4 * n
        PK = 168
        NE = o['nearly']

        NM = o['nmid']
        wq_at = lambda p: 16384 * (1 + p // 4) + 1024 * (p % 4)

        def wq_dma(p):
            return [f's_add_u32 m0, {sM4}, {wq_at(p)}', f's_add_u32 {sw[p]}, {sw[p]}, {sDq}',
                    f'buffer_load_dwordx4 v14, {SW}, {sw[p]} offen lds']

        def b1(isV):
            Qd = []

            def rd(tag, ins):
                Qd.append(tag); a(ins)

            def need(tags):
                last = max(i for i, t in enumerate(Qd) if t in tags)
                return min(15, len(Qd) - 1 - last)

            def RX(p):
                return [(('x', 4 * p + ss), f'ds_read_b128 {v(X(4*p+ss),4)}, v{8+ss} offset:{(p%3)*16384}') for ss in range(4)]

            def RW(k):
                p, ss = divmod(k, 4)
                return [(('w', k, n), f'ds_read_b64_tr_b16 {v(WF(k,n)+2*b,2)}, v{12+n} offset:{(p%4)*8192+ss*2048+b*512}')
                        for n in range(2) for b in range(2)]

            def M(k, n):
                c = '0' if k == 0 else v(ACC[n], 16)
                A_, B_ = (X(k), WF(k, n)) if isV else (WF(k, n), X(k))
                return f'v_mfma_f32_32x32x16_bf16 {v(ACC[n],16)}, {v(A_,4)}, {v(B_,4)}, {c}'
            for x in self.B_D1: a(x)
            for x in self.B_dma(2): a(x)
            if o['prioB0'] >= 0: a(f's_setprio {o["prioB"]}')
            a('s_waitcnt vmcnt(12) lgkmcnt(0)')
            a('s_barrier')
            self.stamp(2)
            for x in RX(0)[:1] + RW(0) + RX(0)[1:] + RW(1): rd(*x)
            D3 = self.B_dma(3)
            for x in D3[:3]: a(x)
            a(f's_add_u32 {sTag}, {sTag}, 0x9e3779b9')
            self.ws_srd(12, sTag, t3)
            a('s_add_u32 s20, s12, s18\ns_addc_u32 s21, s13, 0\ns_mov_b32 s22, 28672\ns_mov_b32 s23, 0x00020000')
            a(f's_add_u32 s24, s12, 14336\ns_addc_u32 s25, s13, 0\ns_mov_b32 s26, {WS_SIZE-14336}\ns_mov_b32 s27, 0x00020000')
            DX = (0, D3[3:])
            D = []
            for k in range(28):
                R = RW(k + 2) if k + 2 < 28 else []
                tags = {('x', k), ('w', k, 0), ('w', k, 1)}
                if DX and (k == 0 or k % 4 == 3):
                    tags |= {('x', 4 * DX[0] + 3)}
                    D = D + DX[1]; DX = None
                a(f's_waitcnt lgkmcnt({need(tags)})')
                a(M(k, 0))
                if k % 4 == 2 and k + 2 < 28:
                    p1 = (k + 2) // 4
                    assert not D and not DX
                    a(f's_waitcnt vmcnt({12 if p1 <= 4 else (6 + NE if p1 == 5 else NE)}) lgkmcnt(0)')
                    a('s_barrier')
                    R = RX(p1) + R
                    if p1 <= 3:
                        Dn = self.B_dma(p1 + 3)
                        D = Dn[:3]; DX = (p1, Dn[3:])
                    if p1 == 4 and NE:
                        DX = (p1, sum([wq_dma(p) for p in range(NE)], []))
                h = (len(R) + 1) // 2
                for x in R[:h]: rd(*x)
                a(M(k, 1))
                if o['prioB1'] >= 0 and k == o['kB1']: a(f's_setprio {o["prioB1"]}')
                for x in R[h:]: rd(*x)
                nd = 3 if len(D) <= 6 else 6
                for x in D[:nd]: a(x)
                D = D[nd:]
            assert not D and not DX
            self.stamp(3)
            for n in range(2):
                for kk in range(2):
                    r = PK + 8 * n + 4 * kk
                    for e in range(4):
                        src = ACC[n] + 8 * kk + 2 * e
                        a(f'v_cvt_pk_bf16_f32 v{r+e}, v{src}, v{src+1}')
                    if isV:
                        a(f'buffer_store_dwordx4 {v(r,4)}, v16, {SWS}, {t1 if kk else t0} offen offset:{512*n} sc1')
                    else:
                        a(f'buffer_store_dwordx4 {v(r,4)}, v16, {SWS}, {t0} offen offset:{2048*n+1024*kk} sc1')
            for p in range(NE, NE + NM):
                for x in wq_dma(p): a(x)
        self.page('B1K', None, fall=False)
        b1(False)
        a('s_branch L_pg_B2')
        self.page('B1V', None, fall=False)
        b1(True)
        BK = 'L_backB'
        self.page('B2', BK)
        assert NE == 4 and NM == 3
        AQ, QPK = 216, 112
        WR = lambda k: 136 + 4 * (k % 8)
        O = lambda i: 24 + 16 * i

        def rdq(k):
            p, ss = divmod(k, 4)
            return [f'ds_read_b64_tr_b16 {v(WR(k)+2*b,2)}, v15 offset:{wq_at(p)+ss*4096+b*256}' for b in range(2)]

        def qproj(k0, k1, extra={}):
            for k in range(k0, min(k0 + 4, k1)):
                for x in rdq(k): a(x)
            for x in extra.get(-1, []): a(x)
            for k in range(k0, k1):
                left = min(k1 - 1, k + 3) - k
                a(f's_waitcnt lgkmcnt({2*left})')
                c = '0' if k == 0 else v(AQ, 16)
                a(f'v_mfma_f32_32x32x16_bf16 {v(AQ,16)}, {v(WR(k),4)}, {v(X(k),4)}, {c}')
                if k + 4 < k1:
                    for x in rdq(k + 4): a(x)
                for x in extra.get(k, []):
                    if x[0] == '@': self.stamp(int(x[1:]))
                    else: a(x)
        Q1 = o['q1']
        ex = {-1: [f'buffer_store_dwordx4 v[208:211], v203, {SWS}, 0 offen' + ' sc1' * o['onesc'],
                   f'v_mov_b32 v6, {sTag}', 'v_mov_b32 v5, 0xdddddddd']}
        if o['padS'] >= 0: ex[-1].append('v_writelane_b32 v6, s100, 2\nv_writelane_b32 v6, s100, 34')
        P = (f's_lshl_b32 s43, s67, 2\ns_sub_u32 s43, s43, {sW}\ns_sub_u32 s43, s43, 1\ns_mul_i32 s45, s43, {KT_STRIDE}\n'
             f's_and_b32 s53, {sTag}, 0xbfff0000\ns_or_b32 s53, s53, 0x20000000\ns_mov_b32 s44, {FO-FKV}').split('\n')
        for k, x in enumerate(P): ex[k] = [x]
        ex.setdefault(o['fp'] - 1, []).append(f'buffer_load_dword v7, v207, {SWS}, s19 offen sc1')
        fl = [f's_waitcnt vmcnt({NM+2})', 's_barrier', '@4', f'buffer_store_dword v6, v23, {SWS}, 0 offen sc1']
        if Q1 <= 16: ex.setdefault(Q1 - 1, []).extend(fl)
        a(f's_waitcnt vmcnt({4+NM})')
        a('s_barrier')
        qproj(0, 16, ex)
        for i in range(4):
            a(f'v_mfma_f32_32x32x16_bf16 {v(O(i),16)}, v[212:215], v[212:215], 0')
        if Q1 > 16:
            for x in fl:
                if x[0] == '@': self.stamp(4)
                else: a(x)
        KVB = lambda T: 168 + 16 * (T % 5)
        KV = lambda T, j: KVB(T) + 4 * j
        Q = lambda i, kk: 88 + 8 * i + 4 * kk
        S = lambda b: 120 + 16 * b

        def kvload(T):
            wrap = T in (5, 9, 13)
            adv = 'v_add_u32 v20, v22, v20' if T == 0 else f'v_mad_i32_i24 v20, v22, {"s43" if T == 1 or wrap else 4}, v20'
            if T < 2: advk = f's_add_u32 s20, s20, {"s45" if T else KT_STRIDE}\ns_addc_u32 s21, s21, 0'
            elif not wrap: advk = f's_add_u32 s20, s20, {4*KT_STRIDE}\ns_addc_u32 s21, s21, 0'
            else: advk = (f's_cmp_eq_u32 s67, {17-T}\ns_cselect_b32 s43, -52, 4\ns_cselect_b32 s49, -1, 0\n'
                          f's_mul_i32 s45, s43, {KT_STRIDE}\ns_add_u32 s20, s20, s45\ns_addc_u32 s21, s21, s49')
            return [f'buffer_load_dwordx4 {v(KV(T,0),4)}, v19, s[20:23], 0 offen sc1',
                    f'buffer_load_dwordx4 {v(KV(T,1),4)}, v19, s[20:23], 0 offen offset:1024 sc1',
                    f'buffer_load_dwordx4 {v(KV(T,2),4)}, v20, {SWS}, 0 offen sc1',
                    f'buffer_load_dwordx4 {v(KV(T,3),4)}, v20, s[24:27], 0 offen sc1',
                    advk, adv]
        a(f's_waitcnt vmcnt(1)\nv_cmp_ne_u32 s[54:55], {sTag}, v7')
        a('s_barrier')
        self.stamp(5)
        a('s_cmp_eq_u64 s[54:55], 0\ns_cbranch_scc0 L_notyet')
        L01 = kvload(0) + kvload(1)
        qproj(16, 28, {16 + j: [x] for j, x in enumerate(L01)})
        a('L_qepi:')
        self.qrest = lambda: qproj(16, 28)
        self.stamp(6)
        for e in range(16):
            sc = 201 if e < 4 else (202 if e >= 12 else 200)
            a(f'v_mul_f32 v{AQ+e}, v{sc}, v{AQ+e}')
            if e % 8 == 7:
                for q in range(e // 2 - 3, e // 2 + 1):
                    a(f'v_cvt_pk_bf16_f32 v{QPK+q}, v{AQ+2*q}, v{AQ+2*q+1}')
                a(f'ds_write_b128 v255, {v(QPK+4*(e//8),4)} offset:{QX+1024*(e//8)}')
        self.kv01 = L01
        self.stamp(7)
        lzl = f'buffer_load_dword v7, v249, {SWS}, s19 offen sc1'
        if o['lzp'] < 0: a(lzl)
        a(f's_waitcnt vmcnt({7 if o["lzp"] < 0 else 6})')
        self.stamp(8)
        if o['prioB2'] != (o['prioB1'] if o['prioB1'] >= 0 else o['prioB']): a(f's_setprio {o["prioB2"]}')
        seq = [(0, 3), (1, 3)] + [(T, i) for T in (0, 1) for i in range(3)] + [(n // 4, n % 4) for n in range(8, 52)] + [(T, i) for i in range(4) for T in (13, 14, 15)]

        def qk(n, half):
            T, i = seq[n]
            c = '0' if half == 0 else v(S(n % 3), 16)
            return f'v_mfma_f32_32x32x16_bf16 {v(S(n%3),16)}, {v(KV(T,half),4)}, {v(Q(i,half),4)}, {c}'

        def pv(n, half):
            T, i = seq[n]
            return f'v_smfmac_f32_32x32x32_bf16 {v(O(i),16)}, {v(KV(T,2+half),4)}, {v(S(n%3)+8*half,8)}, v5'

        def redw(i, q):
            return f'ds_write_b128 v{252+i}, {v(O(i)+4*q,4)} offset:{RED+q*1024}'
        SH = {}
        put = lambda n, q, t, tag=None: SH.setdefault((n, q), []).append((tag, t))
        LZ = o['lz']
        if o['lzp'] >= 0: put(o['lzp'], 1, lzl, ('F', 0))
        put(LZ - 1, 3, '@wait', ('F', 0)); put(LZ - 1, 3, f'v_cmp_ne_u32 vcc, {sTag}, v7')
        put(LZ, 0, 's_cbranch_vccnz L_lazy\nL_lazyback:')
        LZ2 = o['lz2']
        put(LZ2 - 5, 3, f'buffer_load_dword v7, v248, {SWS}, 0 offen sc1', ('F', 1))
        put(LZ2 - 1, 3, '@wait', ('F', 1)); put(LZ2 - 1, 3, f'v_cmp_ne_u32 vcc, {sTag}, v7')
        put(LZ2, 0, 's_cbranch_vccnz L_lazy3\nL_lazyback3:')
        nxt = LZ
        for T in range(2, 16):
            L = kvload(T)
            A_ = L[4].split('\n')
            want = min(4 * T - o['pfd'], 2 * T + 17)
            if T == 6: nxt = max(nxt, LZ2)
            if nxt > want or T >= 13:
                n = max(nxt, want)
                put(n, 1, L[0], ('K', T)); put(n, 2, L[1], ('K', T))
                put(n + 1, 0, L[2], ('V', T)); put(n + 1, 1, L[3], ('V', T))
                if T < 15:
                    if len(A_) > 2: put(n, 3, '\n'.join(A_[:4]))
                    put(n + 1, 2, '\n'.join(A_[-2:])); put(n + 1, 2, L[5])
                nxt = n + 2
                continue
            pk = want
            put(pk, 1, L[0], ('K', T)); put(pk + 1, 1, L[1], ('K', T))
            put(pk + 2, 0, L[2], ('V', T)); put(pk + 3, 0, L[3], ('V', T))
            if len(A_) > 2:
                put(pk, 0, A_[0]); put(pk, 2, '\n'.join(A_[1:3])); put(pk + 1, 0, A_[3])
            put(pk + 1, 2, '\n'.join(A_[-2:])); put(pk + 3, 2, L[5])
            nxt = pk + 4
        seenK, seenV = {0, 1}, set()
        for n in range(64):
            T = seq[n][0]
            if T not in seenK: put(n - 2, 3, '@wait', ('K', T)); seenK.add(T)
            if T not in seenV: put(n, 3, '@wait', ('V', T)); seenV.add(T)
        used = lambda n, q: sum(t.count('\n') + 1 for _, t in SH.get((n, q), []))

        def place(pos, t, tag=None):
            need_ = t.count('\n') + 1
            while used(pos // 4, pos % 4) + need_ > (1 if (pos % 4 < 2 or tag) else 2): pos += 1
            put(pos // 4, pos % 4, t, tag)
            return pos + 1
        pos = place(4 * o['wo0'], 's_barrier')
        for k in range(14):
            pos = place(max(pos, 4 * o['wo0'] + o['wostep'] * k), f's_add_u32 m0, {t2}, {WO+4096*k}')
            pos = place(pos, f'buffer_load_dwordx4 v21, {SWO}, 0 offen lds', ('W', 1))
            if k < 13: pos = place(pos, 's_add_u32 s32, s32, 28672\ns_addc_u32 s33, s33, 0')
        assert pos < 4 * 54
        oflag = f'buffer_store_dword v6, v23, {SWS}, s44 offen sc1'
        for i in range(3):
            n = 56 + 3 * i
            for q in range(4): put(n + (q + 2) // 4, (q + 2) % 4, redw(i, q))
            if i == 0: put(n + 1, 2, '@wait', ('W', 1))
            put(n + 1, 3, 's_waitcnt lgkmcnt(0)\ns_barrier')
            if o['oflag'] == n + 1: put(n + 1, 3, oflag, ('S', 1))
            for j, q in enumerate((1, 0, 2, 3)):
                put(n + 2 if i < 2 else 63, j if i < 2 else 3, f'ds_read_b128 {v(O(i)+4*q,4)}, v255 offset:{RED+q*1024}')
            if i < 2:
                put(n + 3, 1, 's_waitcnt lgkmcnt(0)\ns_barrier')
                if o['oflag'] == n + 3: put(n + 3, 1, oflag, ('S', 1))
        put(48, 2, f's_mov_b32 {t0}, {hx(f2u(2.0**-24))}'); put(49, 2, f's_mov_b32 {t1}, {hx(f2u(2.0**40))}')
        put(49, 1, 's_movk_i32 s43, 0x1f8')
        if o['opre_']:
            put(52, 2, f's_lshl_b32 {t3}, {sT}, 11\ns_add_u32 {t3}, {t3}, {FO}')
            put(53, 2, f'v_and_b32 v10, 15, v1\nv_lshl_add_u32 v10, v10, 7, {t3}')
            put(54, 2, f's_cmp_eq_u32 {sW}, 1\ns_cselect_b32 s46, 0, {WS_SIZE}')
        OO = O(3)
        if o['attst']:
            if o['attst'] == 1:
                for j, n in enumerate((1, 8, 20, 32, 44, 52, 63)): put(n, 0, f's_memtime s[{70+2*j}:{71+2*j}]')
            else:
                for j, n in enumerate((2, 4, 8, 14, 17)): put(n, 1, f's_memrealtime s[{88+2*j}:{89+2*j}]')
        VQ = [('K', 0)] * 2 + [('V', 0)] * 2 + [('K', 1)] * 2 + [('V', 1)] * 2 + [('F', 0)] * (o['lzp'] < 0)
        a('; ---- attention: each wave takes a quarter of the keys for all 128 queries. P stays in fp32 registers,')
        a(qk(0, 0)); a(qk(0, 1))
        a('s_waitcnt lgkmcnt(0)')
        a('s_barrier')
        for i in range(3):
            a(f'ds_read_b128 {v(Q(i,0),4)}, v{252+i} offset:{QX}\nds_read_b128 {v(Q(i,1),4)}, v{252+i} offset:{QX+1024}')
        a(f's_waitcnt vmcnt({3 if o["lzp"] < 0 else 2})')
        put(0, 3, 's_waitcnt lgkmcnt(0)')
        for n in range(64):
            if n == self.o.get('pgB3', 16): self.page('B3', BK)
            if n == self.o.get('pgB4', 48): self.page('B4', BK)
            M = [qk(n + 1, 0) if n < 63 else None, qk(n + 1, 1) if n < 63 else None,
                 pv(n - 1, 0) if n > 0 else None, pv(n - 1, 1) if n > 0 else None]
            if n == 63: M = [M[2], M[3], None, pv(63, 0)]
            for q in range(4):
                if M[q]: a(M[q])
                for tag, x in SH.pop((n, q), []):
                    if x == '@wait':
                        last = max(j for j, t in enumerate(VQ) if t == tag)
                        if not o['nowait']: a(f's_waitcnt vmcnt({len(VQ)-1-last})')
                    else:
                        if not (o['noload'] and tag and tag[0] in 'KV'): a(x)
                        if tag: VQ.append(tag)
                for e in range(4):
                    r = S(n % 3) + 4 * q + e
                    a(f'v_exp_f32 v{r}, v{r}')
        assert not SH, SH
        a(pv(63, 1))
        if o['oflag'] == 65: a(oflag)
        if o['opre_'] == 1: a(f'buffer_load_dword v11, v10, {SWS}, s46 offen sc1')
        self.stamp(9)
        a('; ---- sum the four partial results, check the guard, normalise, publish o (tagged) ----')
        for e in range(15): a(f'v_add_f32 v{O(0)+e}, v{O(0)+e}, v{O(1)+e}')
        a('s_waitcnt lgkmcnt(0)')
        for qi, q in enumerate((1, 0, 2, 3)):
            for i in (0, 2):
                for e in range(4 * q, 4 * q + 4, 2):
                    a(f'v_pk_add_f32 {v(OO+e,2)}, {v(OO+e,2)}, {v(O(i)+e,2)}')
            if qi == 0:
                a(f'v_rcp_f32 v20, v{OO+7}')
                a(f'v_cmp_le_f32 s[54:55], {t0}, v{OO+7}\nv_cmp_ge_f32 vcc, {t1}, v{OO+7}')
                a(f'v_pk_add_f32 v[8:9], {v(OO+4,2)}, {v(OO+6,2)}')
            else:
                a(f'v_pk_add_f32 v[8:9], v[8:9], {v(OO+4*q,2)}\nv_pk_add_f32 v[8:9], v[8:9], {v(OO+4*q+2,2)}')
            if qi == 1: a('s_and_b64 s[54:55], s[54:55], vcc')
        a('v_add_f32 v8, v8, v9')
        a('v_cmp_class_f32 vcc, v8, s43')

        def norm(kk):
            for e in range(0, 8, 2):
                r = OO + 8 * kk + e
                a(f'v_pk_mul_f32 {v(r,2)}, {v(r,2)}, v[20:21] op_sel_hi:[1,0]')
            for e in range(4):
                a(f'v_cvt_pk_bf16_f32 v{24+4*kk+e}, v{OO+8*kk+2*e}, ' + (f'v{OO+8*kk+2*e+1}' if e < 3 else 's53'))
        self.norm = norm
        norm(0)
        a('s_and_b64 s[54:55], s[54:55], vcc')
        a('s_cmp_eq_u64 s[54:55], -1')
        a('s_cbranch_scc0 L_slow' if not o['force_slow'] else 's_branch L_slow')
        a('L_checked:')
        if o['opre_'] == 2: a(f'buffer_load_dword v11, v10, {SWS}, s46 offen sc1')
        a(f'buffer_store_dwordx4 v[24:27], v250, {SWS}, s66 offen sc1')
        norm(1)
        a(f'buffer_store_dwordx4 v[28:31], v250, {SWS}, s66 offen offset:1024 sc1')
        if o['oflag'] == 64: a(oflag)
        self.stamp(10)
        a(f's_cmp_eq_u32 {sJ}, 7\ns_cbranch_scc1 L_nojob')
        a('; ---- out projection: 64 rows x 64 columns; operands of o are validated by their tags before use ----')
        a('v_bfe_u32 v19, v1, 2, 2\nv_mad_u32_u24 v20, v18, 7, v19')
        a('v_and_b32 v21, 1, v1\nv_bfe_u32 v22, v1, 1, 1\nv_lshl_add_u32 v21, v21, 2, v22')
        a('v_bfe_u32 v22, v1, 4, 1\nv_lshl_add_u32 v21, v22, 1, v21\nv_lshlrev_b32 v21, 3, v21')
        a(f's_and_b32 {t1}, {sW}, 1\nv_bfe_u32 v19, v20, 1, 1\nv_xor_b32 v19, {t1}, v19')
        a(f'v_lshl_add_u32 v21, v19, 6, v21\nv_lshl_add_u32 v3, v20, 7, v21\nv_add_u32 v3, {WO}, v3\nv_xor_b32 v2, 64, v3')
        self.stamp(11)
        self.page('B5', 'L_backA')
        WOF = lambda k: 32 + 4 * k
        RL = [f'ds_read_b64_tr_b16 {v(WOF(k)+2*b,2)}, {"v2" if k & 1 else "v3"} offset:{(14*k+4*b)*128}' for k in range(32) for b in range(2)]
        P = []
        pp = lambda t: P.extend(t.split('\n'))
        pp(f's_lshr_b32 {t1}, {sW}, 1\ns_lshl_b32 {t1}, {t1}, 13\nv_add_u32 v4, {t1}, v250')
        pp(f's_lshl_b32 s44, {sT}, 2\ns_lshl_b32 {t1}, {sV}, 1\ns_add_u32 s44, s44, {t1}')
        pp(f's_lshr_b32 {t1}, {sW}, 1\ns_add_u32 {t3}, s44, {t1}\ns_mul_i32 s44, {t3}, {KT_STRIDE}')
        pp(f's_add_u32 s50, s44, {OWS}\ns_and_b32 {t1}, {sW}, 1\ns_lshl_b32 {t1}, {t1}, 12\ns_add_u32 s44, s50, {t1}')
        for y in range(1, 4): pp(f's_add_u32 s{44+y}, s44, {8192*y}')
        TR = 65536
        if o['fullout']:
            pp(f's_lshr_b32 {t1}, {sW}, 1\ns_mul_i32 {t1}, {t1}, 4608\ns_add_u32 {t1}, {t1}, {TR}\ns_and_b32 {t0}, {sW}, 1')
            pp(f's_lshl_b32 s48, {t0}, 6\ns_add_u32 s48, s48, {t1}')
            pp(f'v_mul_u32_u24 v8, 144, v17\nv_lshl_add_u32 v8, v18, 5, v8\nv_add_u32 v8, s48, v8')
            pp(f's_mul_i32 s48, {t0}, 2304\ns_add_u32 s48, s48, {t1}')
            pp(f'v_lshrrev_b32 v17, 3, v1\nv_and_b32 v19, 7, v1\nv_mul_u32_u24 v9, 144, v17\nv_lshl_add_u32 v9, v19, 4, v9\nv_add_u32 v9, s48, v9')
            pp('v_mul_u32_u24 v10, 1792, v17\nv_lshl_add_u32 v10, v19, 4, v10')
            pp(f's_mul_i32 s48, {t3}, {32*1792}\ns_lshl_b32 {t1}, {sJ}, 7\ns_add_u32 s48, s48, {t1}')
            pp(f's_mul_i32 {t1}, {t0}, {16*1792}\ns_add_u32 s48, s48, {t1}\ns_add_u32 s48, s48, 896')
            pp(f's_add_u32 s51, s48, {8*1792}\nv_mov_b32 v5, 0')
        else:
            pp(f's_mul_i32 {t1}, {sW}, 2560\ns_add_u32 {t1}, {t1}, {TR}')
            pp(f'v_mul_u32_u24 v8, 80, v17\nv_lshl_add_u32 v8, v18, 5, v8\nv_add_u32 v8, {t1}, v8')
            pp(f'v_lshrrev_b32 v17, 2, v1\nv_and_b32 v19, 3, v1\nv_mul_u32_u24 v9, 80, v17\nv_lshl_add_u32 v9, v19, 4, v9\nv_add_u32 v9, {t1}, v9')
            pp('v_mul_u32_u24 v10, 1792, v17\nv_lshl_add_u32 v10, v19, 4, v10')
            pp(f's_mul_i32 s48, {t3}, {32*1792}\ns_lshl_b32 {t1}, {sJ}, 7\ns_add_u32 s48, s48, {t1}')
            pp(f's_and_b32 {t1}, {sW}, 1\ns_lshl_b32 {t1}, {t1}, 6\ns_add_u32 s48, s48, {t1}\ns_add_u32 s48, s48, 896')
            pp(f's_add_u32 s51, s48, {16*1792}\nv_mov_b32 v5, 0')
        if o['otouch']:
            pp(f'v_mov_b32 v19, 0\nbuffer_load_dword v15, v19, {SOUT}, s48 offen')
        a(f's_lshl_b32 {t1}, {sT}, 11\ns_add_u32 {t1}, {t1}, {FO}\nv_lshl_add_u32 v6, v1, 7, {t1}\ns_mov_b64 s[54:55], 0xffff')
        if o['oown']: a(f's_bitset0_b32 s54, {sH}')
        for j, x in enumerate(RL):
            if j == o['opoll'] and o['oflag']:
                nopoll = self.lab('nopoll')
                a(f's_cmp_lg_u32 {sW}, 1\ns_cbranch_scc1 {nopoll}')
                if o['oat']: a(f'v_mov_b32 v7, 0\ns_mov_b64 exec, s[54:55]\nbuffer_atomic_or v7, v6, {SWS}, 0 offen sc0\ns_mov_b64 exec, -1\n{nopoll}:')
                else: a(f'buffer_load_dword v7, v6, {SWS}, 0 offen sc1\n{nopoll}:')
            a(x)
            if P: a(P.pop(0))
        assert not P
        nopoll = self.lab('nopoll')
        a(f's_cmp_lg_u32 {sW}, 1\ns_cbranch_scc1 {nopoll}')
        if o['opre_']:
            a(f's_waitcnt vmcnt(3)\nv_cmp_ne_u32 vcc, {sTag}, v11\ns_cbranch_vccz {nopoll}')
        if not o['oflag']: pass
        elif o['oat']: self.poll2(['v7', 'v11', 'v12', 'v13'][:o['pn']], 'v6', SWS, sTag, sCnt, 's[54:55]')
        else: self.poll('v7', 'v6', SWS, sTag, sCnt, '-1', first_issued=True, sleep=2)
        a(f'{nopoll}:')
        a('s_waitcnt lgkmcnt(0)')
        a('s_barrier')
        self.stamp(12)
        for y in range(4):
            a(f's_add_u32 m0, {sM4}, {16384*y}')
            for q in range(4):
                a(f'buffer_load_dwordx4 v250, {SWS}, s{44+y} offen offset:{1024*q} sc1 lds')
                if y < 2:
                    for k in range(16 * y + 4 * q, 16 * y + 4 * q + 4): a(f'v_and_b32 v{WOF(k)+3}, 0xffff, v{WOF(k)+3}')
        OF = lambda k: 160 + 4 * (k % 16)
        AO = 224
        rdo = lambda k: f'ds_read_b128 {v(OF(k),4)}, v4 offset:{16384*(k//8)+1024*(k%8)}'
        mfo = lambda k: f'v_mfma_f32_32x32x16_bf16 {v(AO,16)}, {v(WOF(k),4)}, {v(OF(k),4)}, {"0" if k == 0 else v(AO,16)}'
        def chk(q):
            L = [f'v_xor_b32 v5, s53, v{OF(4*q)+3}']
            L += [f'v_bitop3_b32 v5, v5, v{OF(k)+3}, s53 bitop3:0xf6' for k in range(4 * q + 1, 4 * q + 4)]
            return L + ['v_cmp_lt_u32 vcc, 0xffff, v5']
        br = lambda q: ('s_cbranch_vccnz' if not o['force_retry'] else 's_branch') + f' L_stale{q}\nL_fresh{q}:'
        a('s_waitcnt vmcnt(12)')
        a('s_barrier')
        for k in range(8): a(rdo(k))
        a('s_waitcnt lgkmcnt(4)')
        for x in chk(0): a(x)
        a(br(0))
        for k in range(32):
            a(mfo(k))
            q = k // 4 + 1
            if q == 8: continue
            if q % 2 == 0:
                if k % 4 == 0: a(f's_waitcnt vmcnt({12-2*q})\ns_barrier')
                if k % 4 < 2:
                    for j in range(4): a(rdo(4 * q + 4 * (k % 4) + j))
                if k % 4 == 2:
                    a('s_waitcnt lgkmcnt(4)')
                    for x in chk(q): a(x)
            elif k % 4 == 1:
                a('s_waitcnt lgkmcnt(0)')
                for x in chk(q): a(x)
            if k % 4 == 3: a(br(q))
        self.stamp(13)
        for e in range(8):
            a(f'v_cvt_pk_bf16_f32 v{240+e}, v{AO+2*e}, v{AO+2*e+1}')
            if e == 3: a('ds_write_b128 v8, v[240:243]')
        a('ds_write_b128 v8, v[244:247] offset:16')
        if o['fullout']: a('s_waitcnt lgkmcnt(0)\ns_barrier')
        a(f'ds_read_b128 v[248:251], v9\nds_read_b128 v[252:255], v9 offset:{1152 if o["fullout"] else 1280}')
        a('s_waitcnt lgkmcnt(1)')
        a(f'buffer_store_dwordx4 v[248:251], v10, {SOUT}, s48 offen' + ' sc1' * (o['outsc'] >> 1))
        a('s_waitcnt lgkmcnt(0)')
        a(f'buffer_store_dwordx4 v[252:255], v10, {SOUT}, s51 offen' + ' sc1' * (o['outsc'] >> 1))
        self.stamp(14)
        self.dump_stamps(SWS, sW)
        a('s_endpgm')
        for q in range(8):
            if q == 0: a('; ---- a piece of o had not arrived: fetch these four operands directly until their tags match ----')
            a(f'L_stale{q}:')
            if o['stalepad']: a('s_sleep 127\n' * 8)
            if o['stamps']: a('s_mov_b32 s70, 0')
            a(f's_mov_b32 {sCnt}, {SPIN}\ns_add_u32 {t1}, s50, {4096*q}')
            a(f'L_again{q}:')
            for j in range(4):
                a(f'buffer_load_dwordx4 {v(OF(4*q+j),4)}, v250, {SWS}, {t1} offen offset:{1024*j} sc1')
            a('s_waitcnt vmcnt(0)')
            for x in chk(q): a(x)
            a(f's_sub_u32 {sCnt}, {sCnt}, 1')
            a(f's_cbranch_scc1 L_fresh{q}\ns_cbranch_vccnz L_again{q}\ns_branch L_fresh{q}')

        a('; ---- no out-projection tile; the last workgroup advances the epoch once every workgroup has read it ----')
        a('L_nojob:')
        self.stamp(11)
        a('s_cmp_lg_u32 s2, 511\ns_cbranch_scc1 L_nojob_end')
        a(f'v_min_u32 v6, 223, v0\nv_lshlrev_b32 v6, 7, v6\nv_add_u32 v6, {FU}, v6')
        if not o['noA'] and not o['aexit'] and o['amem'] & 1: self.poll('v7', 'v6', SWS, sTag, sCnt, '-1', sleep=16)
        a(f'v_lshlrev_b32 v6, 7, v0\nv_add_u32 v6, {FKV}, v6')
        self.poll('v7', 'v6', SWS, sTag, sCnt, '-1', sleep=16)
        a('s_barrier')
        if o['padS'] >= 0:
            a(f'v_and_b32 v6, 1, v1\nv_lshlrev_b32 v6, 10, v6\nv_bfe_u32 v7, v1, 1, 2\nv_lshl_add_u32 v6, v7, 13, v6\nv_add_u32 v6, {FKV+8}, v6')
            a(f'buffer_load_dword v7, v6, {SWS}, 0 offen sc1\ns_waitcnt vmcnt(0)')
            for x in range(8): a(f'v_readlane_b32 s{70+x}, v7, {x}')
            a('s_nop 3\ns_mov_b32 s80, s70\ns_mov_b32 s78, s70')
            for x in range(1, 8): a(f's_min_u32 s80, s80, s{70+x}\ns_max_u32 s78, s78, s{70+x}')
            a(f's_sub_u32 s81, s{70+o["padS"]}, s80\ns_mul_i32 s81, s81, 10\ns_add_u32 s81, s81, 3000\ns_add_u32 s81, s81, s80')
            a('L_pad:\ns_memrealtime s[98:99]\ns_waitcnt lgkmcnt(0)\ns_sub_u32 s98, s98, s81\ns_cmp_lt_i32 s98, 0\ns_cbranch_scc1 L_pad')
        self.srd(4, 28, 256)
        a(f's_mov_b32 {t0}, {EPOCH}')
        self.flag_store(sW, t0, 's[4:7]', sTag, 'v19', 'v20')
        a('L_nojob_end:')
        self.dump_stamps(SWS, sW)
        a('s_endpgm')
        a('L_notyet:')
        self.qrest()
        self.poll('v7', 'v207', SWS, sTag, sCnt, '15')
        for x in self.kv01: a(x)
        a('s_branch L_qepi')
        a('L_lazy:')
        a('s_cmp_eq_u32 s19, 0\ns_cbranch_scc1 L_lazy2')
        a(f's_add_u32 {t0}, s60, {FKV+2*2048}\nv_mov_b32 v8, {t0}')
        self.poll('v7', 'v8', SWS, sTag, sCnt, '1', atomic=True, sleep=8)
        a('L_lazy2:')
        self.poll('v7', 'v249', SWS, sTag, sCnt, '0xffff')
        a('s_branch L_lazyback')
        a('L_lazy3:')
        self.poll('v7', 'v248', SWS, sTag, sCnt, '-1')
        a('s_branch L_lazyback3')
        self.slow_path_site()

    def slow_path_site(self):
        a = self.a
        SWS, sK, sCnt, sC14 = self.SWS, 's59', 's58', 's60'
        K0, K1, V0, V1, S0, Q0, Q1, OO = 168, 172, 176, 180, 120, 112, 116, 72
        qk = (f'v_mfma_f32_32x32x16_bf16 {v(S0,16)}, {v(K0,4)}, {v(Q0,4)}, 0\n'
              f'v_mfma_f32_32x32x16_bf16 {v(S0,16)}, {v(K1,4)}, {v(Q1,4)}, {v(S0,16)}')
        ldk = (f'buffer_load_dwordx4 {v(K0,4)}, v19, {SWS}, {sK} offen sc1\n'
               f'buffer_load_dwordx4 {v(K1,4)}, v19, {SWS}, {sK} offen offset:1024 sc1\ns_add_u32 {sK}, {sK}, {KT_STRIDE}')
        a('L_slow:')
        a('v_mov_b32 v8, 0xff800000')
        a(f's_mov_b32 {sK}, {KWS}\ns_mov_b32 {sCnt}, 64')
        a('L_slow1:')
        a(ldk)
        a('s_waitcnt vmcnt(0)')
        a(qk)
        for e in range(0, 16, 2):
            a(f'v_max3_f32 v8, v8, v{S0+e}, v{S0+e+1}')
        a(f's_sub_u32 {sCnt}, {sCnt}, 1\ns_cmp_lg_u32 {sCnt}, 0\ns_cbranch_scc1 L_slow1')
        a('v_mov_b32 v7, v8\ns_nop 1\nv_permlane32_swap_b32 v8, v7\ns_nop 1\nv_max_f32 v8, v8, v7')
        for e in range(16): a(f'v_mov_b32 v{OO+e}, 0')
        a(f's_mov_b32 {sK}, {KWS}\ns_mov_b32 {sCnt}, 64')
        a('L_slow2:')
        a(ldk)
        a(f'buffer_load_dwordx4 {v(V0,4)}, v251, {SWS}, 0 offen sc1')
        a(f'buffer_load_dwordx4 {v(V1,4)}, v251, s[24:27], 0 offen sc1\nv_add_u32 v251, v22, v251')
        a('s_waitcnt vmcnt(0)')
        a(qk)
        for e in range(16): a(f'v_sub_f32 v{S0+e}, v{S0+e}, v8')
        for e in range(16): a(f'v_exp_f32 v{S0+e}, v{S0+e}')
        a(f'v_smfmac_f32_32x32x32_bf16 {v(OO,16)}, {v(V0,4)}, {v(S0,8)}, v5')
        a(f'v_smfmac_f32_32x32x32_bf16 {v(OO,16)}, {v(V1,4)}, {v(S0+8,8)}, v5')
        a('s_nop 15')
        a(f's_sub_u32 {sCnt}, {sCnt}, 1\ns_cmp_lg_u32 {sCnt}, 0\ns_cbranch_scc1 L_slow2')
        a(f'v_rcp_f32 v20, v{OO+7}')
        self.norm(0)
        a('s_branch L_checked')

    def tlb_warm(self):
        a = self.a
        if self.o['mwarm']:
            a('s_lshl_b32 s60, s2, 2\ns_add_u32 s60, s60, s36\ns_mul_i32 s61, s60, 1792\ns_mul_i32 s60, s60, 1280')
            a(f'v_min_u32 v253, 13, v1\nv_lshl_add_u32 v253, v253, 7, s61\nglobal_load_dword v2, v253, s[18:19]')
            a(f'v_min_u32 v252, 9, v1\nv_lshl_add_u32 v252, v252, 7, s60\nv_min_u32 v252, {448*2688-128}, v252\nglobal_load_dword v2, v252, s[20:21]')
        if not self.o['tlbw']: return
        a(f'v_min_u32 v253, 2, v1\nv_mul_u32_u24 v253, {23*KT_STRIDE}, v253\nv_add_u32 v253, {KWS+17*KT_STRIDE+90112}, v253')
        a(f'v_mov_b32 v252, 0x800000\nv_cmp_lt_u32 vcc, 2, v1\nv_cndmask_b32 v253, v253, v252, vcc')
        a('v_and_b32 v252, 1, v1\nv_mul_u32_u24 v252, 0x300000, v252\nv_mov_b32 v251, 0')
        a('global_load_dword v2, v253, s[28:29]\nglobal_load_dword v2, v252, s[24:25]\nglobal_load_dword v2, v251, s[22:23]')

    def selfrag(self, base, vidx, vown):
        a = self.a
        a(f'v_and_b32 v28, 1, {vidx}\nv_lshlrev_b32 v28, 4, v28\nv_lshlrev_b32 v28, v28, v19')
        a(f'v_cmp_eq_u32 vcc, {vown}, v18\nv_lshrrev_b32 v29, 1, {vidx}\nv_cndmask_b32 v28, 0, v28, vcc')
        for q in range(8):
            m = f's[{60+2*(q%2)}:{61+2*(q%2)}]'
            a(f'v_cmp_eq_u32 {m}, {q}, v29')
            if q: a(f'v_cndmask_b32 v{base+q-1}, 0, v28, s[{60+2*((q-1)%2)}:{61+2*((q-1)%2)}]')
        a(f'v_cndmask_b32 v{base+7}, 0, v28, s[62:63]')

    def A_prologue(self):
        a = self.a; o = self.o
        SU = 's[32:35]'
        sW, sG, sR, sP, sTag, sCnt, sLdt, sDsk, sCh, sHalf = ['s%d' % i for i in range(36, 46)]
        t0, t1, t2, t3, sFl = 's46', 's47', 's48', 's49', 's50'
        TILE = 52224
        self.stamp(0)
        a('; ==== S4D role ====')
        a(f's_setprio {o["prioA"]}')
        a('v_lshrrev_b32 v2, 6, v0\nv_and_b32 v1, 63, v0')
        a(f'v_readfirstlane_b32 {sW}, v2')
        a(f's_and_b32 {sG}, s2, 7\ns_lshr_b32 {sR}, s2, 3')
        if o['codepf']:
            a('; read 16 lines of this kernel per workgroup so that later instruction fetches hit L2 (value unused)')
            a('s_getpc_b64 s[60:61]\nL_pc:')
            a(f'v_lshrrev_b32 v8, 4, v0\nv_lshl_add_u32 v8, {sR}, 4, v8\nv_lshlrev_b32 v8, 7, v8')
            a('v_min_u32 v8, L_codeend-L_pc-4, v8\nv_mov_b32 v9, s61')
            a('v_add_co_u32 v8, vcc, s60, v8\nv_addc_co_u32 v9, vcc, 0, v9, vcc')
            a('global_load_dword v255, v[8:9], off')
        if o['mix']:
            a(f's_sub_u32 {sG}, {sG}, 1\ns_cbranch_scc1 L_idle')
        else:
            a(f's_and_b32 {t0}, s2, 0x86\ns_cmp_eq_u32 {t0}, 0\ns_cbranch_scc1 L_idle')
            a(f's_lshl_b32 {t0}, {sG}, 4\ns_add_u32 {t0}, {t0}, {sR}\ns_sub_u32 {t0}, {t0}, 16')
            a(f's_sub_u32 {sG}, {sG}, 2\ns_cselect_b32 {sG}, 6, {sG}\ns_cselect_b32 {sR}, {t0}, {sR}')
        if o['noA']: a('s_endpgm')
        a(f's_lshl_b32 {sP}, {sG}, 5\ns_add_u32 {sP}, {sP}, {sR}')
        a(f's_lshl_b32 {t0}, {sP}, 10\nv_lshl_add_u32 v2, v0, 2, {t0}')
        a(f's_and_b32 {sHalf}, {sW}, 1')
        a('v_lshrrev_b32 v5, 3, v1\nv_and_b32 v6, 7, v1\nv_lshrrev_b32 v7, 5, v1')
        a(f's_lshl_b32 {t0}, {sHalf}, 2\nv_or_b32 v7, {t0}, v7\nv_xor_b32 v7, v6, v7\nv_lshlrev_b32 v7, 4, v7')
        a('v_mul_u32_u24 v3, 896, v5\nv_xor_b32 v8, 32, v7')
        a(f'v_add_u32 v4, {7168-1024}, v3\nv_add_u32 v4, v4, v8\nv_add_u32 v3, v3, v7')
        a(f's_lshl_b32 {t0}, {sR}, 2\ns_add_u32 {t0}, {t0}, {sW}\ns_mul_i32 {t0}, {t0}, {16*896}')
        a(f's_lshl_b32 {t1}, {sG}, 7\ns_add_u32 {t0}, {t0}, {t1}')
        a(f's_lshl_b32 {t1}, {sW}, 11\ns_lshl_b32 {t2}, {sP}, 2')
        a(f's_add_u32 m0, {t1}, {TILE}')
        if o['afirst'] != 2:
            a('v_lshrrev_b32 v18, 5, v1\nv_mov_b32 v19, 0x3c00\nv_and_b32 v16, 15, v1\nv_bfe_u32 v17, v1, 4, 1')
            self.selfrag(48, 'v16', 'v17')
        a('s_waitcnt lgkmcnt(0)')
        def ldpar():
            for k in range(4):
                a(f'global_load_dword v{12+k}, v2, s[{6+2*k}:{7+2*k}]')
        if not o['ufirst']: ldpar()
        a(f's_load_dword {sLdt}, s[14:15], {t2}')
        a(f's_load_dword {sTag}, s[28:29], {EPOCH}')
        a(f's_load_dword {sDsk}, s[16:17], {t2}')
        self.srd(32, 4, 2048 * 896)
        a(f'buffer_load_dwordx4 v3, {SU}, {t0} offen lds')
        a(f'buffer_load_dwordx4 v4, {SU}, {t0} offen offset:1024 lds')
        if o['ufirst']: ldpar()
        assert not o['ufirst']
        self.tlb_warm()
        self.stamp(10)
        if o['prioA0'] != o['prioA']: a(f's_setprio {o["prioA0"]}')

    def role_A(self):
        a = self.a; o = self.o
        SWS, SOUT = 's[4:7]', 's[8:11]'
        sW, sG, sR, sP, sTag, sCnt, sLdt, sDsk, sCh, sHalf = ['s%d' % i for i in range(36, 46)]
        t0, t1, t2, t3, sFl = 's46', 's47', 's48', 's49', 's50'
        KC, UTL, TILE, XCH = 0, 36864, 52224, 60416
        UTS = 7584
        a(f's_lshl_b32 {sFl}, {sP}, 7\ns_lshr_b32 {sCh}, {sW}, 1')
        for e in range(4): a(f'v_mov_b32 v{16+e}, 0')
        a(f'v_and_b32 v8, 127, v0\nv_min_u32 v8, 89, v8\nv_lshlrev_b32 v8, 4, v8')
        a(f's_mul_i32 {t0}, {sCh}, {UTS}\nv_add_u32 v8, {t0}, v8')
        a(f'ds_write_b128 v8, v[16:19] offset:{UTL}')
        a('v_bfe_u32 v8, v0, 2, 3\nv_mul_u32_u24 v8, 4160, v8\nv_and_b32 v7, 3, v0\nv_lshl_add_u32 v8, v7, 4, v8')
        a(f'ds_write_b128 v8, v[16:19] offset:{KC}')
        a(f's_lshl_b32 {t0}, {sW}, 1\nv_lshrrev_b32 v7, 5, v1\nv_add_u32 v7, {t0}, v7')
        a('v_xor_b32 v7, v7, v6\nv_lshlrev_b32 v7, 4, v7\nv_lshl_add_u32 v7, v6, 9, v7')
        a('v_and_b32 v8, 3, v5\nv_lshl_add_u32 v9, v8, 2, v7')
        a('v_lshlrev_b32 v10, 13, v5\nv_lshl_add_u32 v10, v6, 4, v10')
        a(f's_lshl_b32 {t0}, {sG}, 2\ns_add_u32 {t0}, {t0}, {sW}\ns_lshl_b32 {t0}, {t0}, 16')
        a(f's_lshl_b32 {t1}, {sR}, 8\ns_add_u32 {t3}, {t0}, {t1}\ns_add_u32 s51, {t3}, {UT}')
        L2E = math.log2(math.e)
        l2e_hi = struct.unpack('<f', struct.pack('<f', L2E))[0]
        cL, cLlo, cLn2, cRev, c8, c256 = 's52', 's53', 's54', 's55', 's[56:57]', 's[58:59]'
        a(f's_mov_b32 {cL}, {hx(f2u(l2e_hi))}\ns_mov_b32 {cLlo}, {hx(f2u(L2E-l2e_hi))}\ns_mov_b32 {cLn2}, {hx(f2u(math.log(2)))}')
        a(f's_mov_b32 {cRev}, {hx(f2u(1/(2*math.pi)))}')
        a(f's_mov_b32 s56, {hx(f2u(8.0))}\ns_mov_b32 s57, s56\ns_mov_b32 s58, {hx(f2u(256.0))}\ns_mov_b32 s59, s58')

        def exp_bf16(d, x, ta, tb):
            return [f'v_mul_f32 {ta}, {cL}, {x}', f'v_fma_f32 {tb}, {x}, {cL}, -{ta}', f'v_exp_f32 {ta}, {ta}',
                    f'v_fma_f32 {tb}, {x}, {cLlo}, {tb}', f'v_mul_f32 {tb}, {cLn2}, {tb}', f'v_fma_f32 {ta}, {ta}, {tb}, {ta}',
                    f'v_cvt_pk_bf16_f32 {ta}, {ta}, {ta}', f'v_lshlrev_b32 {d}, 16, {ta}']
        a(f's_lshl_b32 {t0}, {sG}, 12\ns_add_u32 {t0}, {t0}, {FU}\nv_and_b32 v6, 31, v1\nv_lshl_add_u32 v6, v6, 7, {t0}')
        AK = 32
        SL, SH = 48, 56
        SET = lambda b: 64 + 32 * b
        TL, TH = 128, 160
        PL = lambda b: 192 + 16 * (b % 2)
        PH = 224
        MUL = lambda j, b: 240 + 2 * j + b
        BB = lambda c, b: 252 + 2 * c + b
        kslot = {0: 0, 4: 1, 1: 2, 5: 3, 2: 4, 6: 5, 3: 6, 7: 7, 8: 8, 516: 9, 512: 10, 520: 11, 1024: 12, 1032: 13, 1536: 14, 1544: 15}
        rows = [[0, 1, 2, 3, 4, 5, 6, 7], [0, 0, 2, 4, 4, 4, 6, 8]]
        tail = [512, 516, 520, 1024, 1032, 1536, 1544, 1544]
        nib = lambda L: sum(kslot[x] << (4 * i) for i, x in enumerate(L))
        selfrag = self.selfrag
        a('v_lshrrev_b32 v18, 5, v1\nv_mov_b32 v19, 0x3c00')
        if o['afirst'] == 2:
            a('v_and_b32 v16, 15, v1\nv_bfe_u32 v17, v1, 4, 1')
            selfrag(48, 'v16', 'v17')
        a(f'v_bfe_u32 v17, v1, 2, 1\nv_mov_b32 v16, {hx(nib(rows[0]))}\nv_mov_b32 v30, {hx(nib(rows[1]))}')
        a(f'v_cmp_eq_u32 vcc, 1, v17\nv_bfe_u32 v28, v1, 3, 1\nv_and_b32 v29, 3, v1\nv_cndmask_b32 v16, v16, v30, vcc')
        a(f'v_and_b32 v31, 16, v1\nv_cmp_eq_u32 vcc, 16, v31\nv_mov_b32 v30, {hx(nib(tail))}\nv_lshl_add_u32 v28, v28, 2, v29')
        a('v_cndmask_b32 v16, v16, v30, vcc\nv_lshlrev_b32 v28, 2, v28\nv_bfe_u32 v16, v16, v28, 4')
        selfrag(SH, 'v16', 'v17')
        if o['omod_']: a('s_setreg_imm32_b32 hwreg(HW_REG_MODE, 9, 1), 0')
        self.touch(sW, {1: 'A2', 2: 'A3', 3: 'B5'}, 'L_backA')
        if o['lay'] == 2:
            a('s_branch L_pg_A1\nL_Bsetup:')
            self.B_setup()
        self.page('A1', None, fall=(o['lay'] == 1))
        a('s_waitcnt lgkmcnt(0)')
        a(f's_add_u32 {sTag}, {sTag}, 0x9e3779b9')
        self.ws_srd(4, sTag, t0)
        self.srd(8, 24, 2048 * 1792)
        a(f's_lshl_b32 {t1}, {sCh}, 4\ns_lshr_b32 {sLdt}, {sLdt}, {t1}\ns_lshl_b32 {sLdt}, {sLdt}, 16')
        a(f's_lshr_b32 {sDsk}, {sDsk}, {t1}\ns_lshl_b32 {sDsk}, {sDsk}, 16')
        a(f'v_mov_b32 v28, {sLdt}')
        for x in exp_bf16('v11', 'v28', 'v29', 'v30'): a(x)
        a(f'v_mul_f32 v4, {hx(f2u(-L2E))}, v11\nv_mul_f32 v5, {cRev}, v11')
        a(f's_mov_b32 s56, {hx(f2u(16.0))}\ns_mov_b32 s57, 0x07060302')
        self.stamp(11)
        if o['ufirst']:
            a('s_waitcnt vmcnt(4)\ns_barrier')
            if o['prioA0'] != o['prioA']: a(f's_setprio {o["prioA"]}')
            for hq in range(2):
                for e in range(4): a(f'ds_read_b32 v{20+4*hq+e}, v9 offset:{TILE+hq*4096+e*128}')
            a('s_waitcnt vmcnt(0)')
        else:
            a(f's_waitcnt vmcnt({2+3*o["tlbw"]+2*o["mwarm"]})')
            if o['prioA0'] != o['prioA']: a(f's_setprio {o["prioA"]}')
        self.stamp(1)
        a('v_and_b32 v28, 0x7fff7fff, v14\nv_and_b32 v29, 0x7fff7fff, v15\nv_pk_max_u16 v28, v28, v29')
        a('v_lshlrev_b32 v29, 16, v28\nv_max_u32 v28, v28, v29')
        V = []
        MQ = []

        def vop(t, done=None, needs=None): V.append((t, done, needs))
        for ctl in ('row_shr:1', 'row_shr:2', 'row_shr:4', 'row_shr:8', 'row_bcast:15', 'row_bcast:31'):
            pass
        dpp = [f'v_max_u32_dpp v28, v28, v28 {c} row_mask:0xf bank_mask:0xf'
               for c in ('row_shr:1', 'row_shr:2', 'row_shr:4', 'row_shr:8', 'row_bcast:15', 'row_bcast:31')]

        def pmul(dr, di, sr, si, m, done=None):
            vop(f'v_pk_mul_f16 v{dr}, v{sr}, v{m} op_sel:[0,0] op_sel_hi:[1,0]')
            vop(f'v_pk_mul_f16 v{di}, v{sr}, v{m} op_sel:[0,1] op_sel_hi:[1,1]')
            vop(f'v_pk_fma_f16 v{dr}, v{si}, v{m}, v{dr} op_sel:[0,1,0] op_sel_hi:[1,1,1] neg_lo:[1,0,0] neg_hi:[1,0,0]')
            vop(f'v_pk_fma_f16 v{di}, v{si}, v{m}, v{di} op_sel:[0,0,0] op_sel_hi:[1,0,1]', done)

        urd = (f's_waitcnt vmcnt({3*o["tlbw"]+2*o["mwarm"]})\ns_barrier\n' +
               '\n'.join(f'ds_read_b32 v{20+4*hq+e}, v9 offset:{TILE+hq*4096+e*128}' for hq in range(2) for e in range(4)))
        ust = (f's_waitcnt lgkmcnt(0)\nbuffer_store_dwordx4 v[20:23], v10, {SWS}, s51 offen sc1\n'
               f'buffer_store_dwordx4 v[24:27], v10, {SWS}, s51 offen offset:128 sc1')

        def setup(job):
            tmp = [SET(0) + 8 * c + e for c in range(4) for e in range(1, 8)]
            Z = {p: (tmp[2 * i], tmp[2 * i + 1]) for i, p in enumerate((1, 2, 4, 8, 16, 32, 64, 128, 256, 512))}
            c4, c8 = (tmp[20], tmp[21]), (tmp[22], tmp[23])
            ta, tb, m128, m256 = tmp[24], tmp[25], tmp[26], tmp[27]
            for k in range(4):
                vop(f'v_lshlrev_b32 v{16+k}, 16, v{12+k}' if job == 0 else f'v_and_b32 v{16+k}, 0xffff0000, v{12+k}')
                if job == 0 and k in (0, 3): vop(dpp.pop(0))
            for i, x in enumerate(exp_bf16('v16', 'v16', 'v29', 'v30')):
                vop(x)
                if job == 0 and i in (1, 4, 7): vop(dpp.pop(0))
            vop('v_mul_f32 v17, v17, v5'); vop('v_mul_f32 v16, v16, v4')
            if job == 0:
                vop(dpp.pop(0))
                if not o['ulate']: vop(urd)
                vop('v_readlane_b32 s60, v28, 63')

            def cexp(p, sc):
                r, i = Z[p]
                if sc:
                    vop(f'v_mul_f32 v{i}, {sc}, v17'); vop(f'v_mul_f32 v{ta}, {sc}, v16')
                    vop(f'v_fract_f32 v{i}, v{i}'); vop(f'v_exp_f32 v{ta}, v{ta}')
                else:
                    vop(f'v_fract_f32 v{i}, v17'); vop(f'v_exp_f32 v{ta}, v16')
                vop(f'v_cos_f32 v{r}, v{i}'); vop(f'v_sin_f32 v{i}, v{i}')
                vop(f'v_mul_f32 v{r}, v{r}, v{ta}'); vop(f'v_mul_f32 v{i}, v{i}, v{ta}')

            def csq(p):
                r, i = Z[p]; R_, I_ = Z[2 * p]
                vop(f'v_mul_f32 v{R_}, v{r}, v{r}')
                if o['omod_']: vop(f'v_mul_f32 v{I_}, v{r}, v{i} mul:2')
                else: vop(f'v_add_f32 v{I_}, v{r}, v{r}'); vop(f'v_mul_f32 v{I_}, v{I_}, v{i}')
                vop(f'v_fma_f32 v{R_}, -v{i}, v{i}, v{R_}')

            def cm(d, z):
                vop(f'v_mul_f32 v{d[0]}, v18, v{z[0]}'); vop(f'v_mul_f32 v{d[1]}, v18, v{z[1]}')
                vop(f'v_fma_f32 v{d[0]}, -v19, v{z[1]}, v{d[0]}'); vop(f'v_fmac_f32 v{d[1]}, v19, v{z[0]}')
            cexp(1, None)
            if job == 0:
                vop('s_lshr_b32 s60, s60, 23\ns_max_u32 s60, s60, 9\ns_sub_u32 s61, s60, 8\ns_lshl_b32 s61, s61, 23\n'
                    's_sub_u32 s60, 262, s60\ns_lshl_b32 s60, s60, 23')
            cexp(16, 's56')
            if job == 0 and not o['ulate']: vop(ust)
            cexp(256, 's58')
            if job == 0 and o['ulate'] == 1: vop(urd)
            for p in (1, 2, 4, 16, 32, 64, 256): csq(p)
            if job == 0 and o['ulate'] == 1: vop(ust)
            vop('v_mul_f32 v18, s60, v18'); vop('v_mul_f32 v19, s60, v19')
            cm(c4, Z[4]); cm(c8, Z[8])
            for j, p in enumerate((1, 2, 16, 32, 64, 512)):
                vop(f'v_cvt_pk_f16_f32 v{MUL(j,0)}, v{Z[p][0]}, v{Z[p][1]}')
            vop(f'v_cvt_pk_f16_f32 v{m128}, v{Z[128][0]}, v{Z[128][1]}')
            vop(f'v_cvt_pk_f16_f32 v{m256}, v{Z[256][0]}, v{Z[256][1]}')
            for j in range(6): vop(f'v_mov_b32 v{MUL(j,1)}, v{MUL(j,0)}')
            S0, S1 = SET(0), SET(1)
            vop(f'v_cvt_pk_f16_f32 v{S0}, 1.0, v{Z[8][0]}'); vop(f'v_cvt_pk_f16_f32 v{S0+8}, 0, v{Z[8][1]}')
            vop(f'v_cvt_pk_f16_f32 v{S0+16}, v18, v{c4[0]}'); vop(f'v_cvt_pk_f16_f32 v{S0+24}, v19, v{c4[1]}')
            vop(f'v_cvt_pk_f16_f32 v{BB(0,0)}, v18, v{c8[0]}'); vop(f'v_cvt_pk_f16_f32 v{BB(1,0)}, v19, v{c8[1]}')
            V.append(('', None, ('TH', 2 * job - 1, 3) if job else None))
            pmul(S1, S1 + 8, S0, S0 + 8, m128)
            pmul(S1 + 16, S1 + 24, S0 + 16, S0 + 24, m256)
            pmul(BB(0, 1), BB(1, 1), BB(0, 0), BB(1, 0), m256)
            if job == 0 and o['ulate'] == 2: vop(urd)
            for j in range(6): vop(f'v_permlane32_swap_b32 v{MUL(j,0)}, v{MUL(j,1)}')
            for c in range(4): vop(f'v_permlane32_swap_b32 v{S0+8*c}, v{S1+8*c}')
            for c in range(2): vop(f'v_permlane32_swap_b32 v{BB(c,0)}, v{BB(c,1)}')
            if job == 0 and o['ulate'] == 2: vop(ust)

        def tmf(T, c, src, sel, half, need, tag):
            d = v(T + 16 * c, 16)
            MQ.append((f'v_mfma_f32_32x32x16_f16 {d}, {v(src+4*half,4)}, {v(sel+4*half,4)}, {"0" if half == 0 else d}', need, tag))

        def lopk(b):
            R_, I_, bb = SET(b % 2), SET(b % 2) + 8, b % 2
            pmul(R_ + 1, I_ + 1, R_, I_, MUL(2, bb))
            for e in range(2): pmul(R_ + 2 + e, I_ + 2 + e, R_ + e, I_ + e, MUL(3, bb), ('lo0', b) if e else None)
            for e in range(4): pmul(R_ + 4 + e, I_ + 4 + e, R_ + e, I_ + e, MUL(4, bb), ('lo1', b) if e == 3 else None)
            for n, (c, half) in enumerate(((0, 0), (1, 0), (0, 1), (1, 1))):
                tmf(TL, c, R_ + 8 * c, SL, half, ('lo%d' % half, b), ('TL', b, n))

        def hipk(b):
            R_, I_, bb = SET(b % 2) + 16, SET(b % 2) + 24, b % 2
            pmul(R_ + 1, I_ + 1, R_, I_, MUL(0, bb))
            pmul(R_ + 2, I_ + 2, R_, I_, MUL(1, bb))
            pmul(R_ + 3, I_ + 3, R_ + 1, I_ + 1, MUL(1, bb), ('hi0', b))
            pmul(R_ + 4, I_ + 4, R_, I_, MUL(5, bb))
            pmul(R_ + 5, I_ + 5, BB(0, bb), BB(1, bb), MUL(5, bb))
            vop(f'v_perm_b32 v{R_+4}, v{R_+4}, v{BB(0,bb)}, s57'); vop(f'v_perm_b32 v{I_+4}, v{I_+4}, v{BB(1,bb)}, s57')
            pmul(R_ + 6, I_ + 6, R_ + 5, I_ + 5, MUL(5, bb))
            pmul(R_ + 7, I_ + 7, R_ + 6, I_ + 6, MUL(5, bb), ('hi1', b))
            for n, (c, half) in enumerate(((0, 0), (1, 0), (0, 1), (1, 1))):
                tmf(TH, c, R_ + 8 * c, SH, half, ('hi%d' % half, b), ('TH', b, n))

        def cvtL(b):
            for e in range(16):
                vop(f'v_cvt_pk_f16_f32 v{PL(b)+e}, v{TL+2*e}, v{TL+2*e+1}', None, ('TL', b, 2 + e // 8))

        def cvtH(b):
            for e in range(16):
                m = '-' if e >= 8 else ''
                vop(f'v_cvt_pk_f16_f32 v{PH+e}, {m}v{TH+2*e}, {m}v{TH+2*e+1}', ('ph', b, e // 4) if e % 4 == 3 else None,
                    ('TH', b, 2 + e // 8))
            for q in range(4):
                c = '0' if (b == 0 and q == 0) else v(AK, 16)
                MQ.append((f'v_mfma_f32_32x32x16_f16 {v(AK,16)}, {v(PH+4*q,4)}, {v(PL(b)+4*q,4)}, {c}', ('ph', b, q), ('F', b, q)))
        UFL = [(1, 1), (2, -1), (2, 0), (2, 1), (3, 0), (1, 0), (0, 1)][o['ufl']]

        def uflag():
            if o['astamp']: vop('s_memtime s[88:89]')
            vop(f's_add_u32 {t0}, {sFl}, {FU}\ns_waitcnt vmcnt(0)\ns_barrier')
            V.append(('@flag', None, None))
            vop('.p2align 3')
        for b in range(4):
            if (b, -1) == UFL: uflag()
            if b % 2 == 0: setup(b // 2)
            if (b, 0) == UFL: uflag()
            if b == 2 and o['upos'] == 0: V.append(('@poll', None, None))
            if b == 3 and o['upos'] == 0: V.append(('@ldu', None, None))
            if b % 2 == 0: vop('.p2align 3')
            lopk(b)
            if b: cvtH(b - 1)
            if b == 2: V.append(('@pageA2', None, None))
            if (b, 1) == UFL: uflag()
            hipk(b)
            if b == 2 and o['upos'] == 1: V.append(('@poll', None, None))
            if b == 3 and o['upos'] == 1: V.append(('@ldu', None, None))
            cvtL(b)
        if o['upos'] == 2: V.append(('@poll0', None, None))
        cvtH(3)
        if o['kprio']:
            MQ = [(f's_setprio 3\n{x[0]}\ns_setprio 0', x[1], x[2]) for x in MQ]
            MQ[-1] = (MQ[-1][0] + f'\ns_setprio {o["prioA"]}', MQ[-1][1], MQ[-1][2])
        if o['nokgen']: MQ = [('', x[1], x[2]) for x in MQ]
        done, mdone, since = {}, set(), 99
        for n, (t, d, need_) in enumerate(V):
            while need_ and need_ not in mdone:
                x = MQ.pop(0); assert x[1] in done; a(x[0]); mdone.add(x[2]); since = 0
            if t == '@flag':
                self.stamp(13)
                if o['localY']: a(f's_getreg_b32 s64, hwreg(HW_REG_XCC_ID, 0, 4)\ns_add_u32 s64, s64, {sTag}\ns_add_u32 s64, s64, 1')
                self.flag_store(sW, t0, SWS, sTag, 'v29', 'v30', word1='s64' if o['localY'] else None)
            elif t.startswith('@page'):
                if t == '@pageA1': self.stamp(12)
                self.page(t[5:], 'L_backA')
            elif t == '@poll':
                a(f'buffer_load_dword v7, v6, {SWS}, 0 offen sc1')
            elif t == '@poll0':
                nopoll = self.lab('nopoll')
                a(f's_cmp_lg_u32 {sW}, 0\ns_cbranch_scc1 {nopoll}')
                a(f'buffer_load_dword v7, v6, {SWS}, 0 offen sc1\n{nopoll}:')
            elif t == '@ldu':
                a(f's_lshl_b32 {t1}, {sP}, 13\ns_add_u32 {t1}, {t1}, {UT}\nv_lshlrev_b32 v10, 5, v0')
                a(f's_waitcnt vmcnt(0)\nv_cmp_ne_u32 vcc, {sTag}, v7\ns_cbranch_vccnz L_uwait\nL_uback:')
                a(f'buffer_load_dwordx4 v[20:23], v10, {SWS}, {t1} offen sc1')
                a(f'buffer_load_dwordx4 v[24:27], v10, {SWS}, {t1} offen offset:16 sc1')
                if o['localY']: a(f'buffer_load_dword v7, v6, {SWS}, 0 offen offset:4 sc1')
                a('.p2align 3')
            elif t:
                if not (o['nokgen'] and t.startswith('v_')): a(t)
                if 's_barrier' in t and not done: self.stamp(2)
            if d: done[d] = n
            since += 1
            if o['kyield'] and n % o['kyield'] == 0: a('s_setprio 0')
            if o['kyield'] and (n % o['kyield'] == 2 or n == len(V) - 1): a(f's_setprio {o["prioA"]}')
            if MQ and since >= o['kgap'] and MQ[0][1] in done and n - done[MQ[0][1]] >= 2:
                x = MQ.pop(0); a(x[0]); mdone.add(x[2]); since = 0
        for x in MQ: a(x[0])
        a('v_add_f32 v31, v11, v11\nv_mul_f32 v31, s61, v31')
        a(f's_lshl_b32 {t1}, {sW}, 12\nv_lshl_add_u32 v8, v1, 4, {t1}\nv_xor_b32 v9, 4096, v8')
        a(f's_mul_i32 {t0}, {sCh}, 16640\ns_lshl_b32 {t1}, {sHalf}, 11\ns_add_u32 {t1}, {t1}, {t0}\nv_lshl_add_u32 v12, v1, 4, {t1}')
        for q in range(4):
            for e in range(4 * q, min(15, 4 * q + 4)): a(f'v_mul_f32 v{AK+e}, v31, v{AK+e}')
            a(f'ds_write_b128 v8, {v(AK+4*q,4)} offset:{XCH+1024*q}')
        self.stamp(3)
        if o['upos'] == 2:
            a(f's_lshl_b32 {t1}, {sP}, 13\ns_add_u32 {t1}, {t1}, {UT}\nv_lshlrev_b32 v10, 5, v0')
            a(f's_cmp_lg_u32 {sW}, 0\ns_cbranch_scc1 L_uback')
            a(f's_waitcnt vmcnt(0)\nv_cmp_ne_u32 vcc, {sTag}, v7\ns_cbranch_vccnz L_uwait\nL_uback:')
        a('v_and_b32 v13, 1, v1\nv_cmp_eq_u32 s[62:63], 1, v13')
        a('s_waitcnt lgkmcnt(0)\ns_barrier')
        self.stamp(4)
        if o['upos'] == 2:
            a(f'buffer_load_dwordx4 v[20:23], v10, {SWS}, {t1} offen sc1')
            a(f'buffer_load_dwordx4 v[24:27], v10, {SWS}, {t1} offen offset:16 sc1')
            if o['localY']: a(f'buffer_load_dword v7, v6, {SWS}, 0 offen offset:4 sc1')
        for q in range(4): a(f'ds_read_b128 {v(48+4*q,4)}, v9 offset:{XCH+1024*q}')
        a('v_and_b32 v14, 15, v1\nv_lshrrev_b32 v15, 4, v1')
        a('v_lshlrev_b32 v16, 3, v15\nv_sub_u32 v16, v14, v16\nv_add_u32 v16, 25, v16')
        a('v_sub_u32 v17, 0, v16\nv_and_b32 v17, 3, v17\nv_add_u32 v16, v16, v17')
        a('v_mul_u32_u24 v17, 4160, v17\nv_lshl_add_u32 v16, v16, 1, v17')
        a(f's_lshl_b32 {t1}, {sHalf}, 9\ns_add_u32 {t1}, {t1}, {t0}\nv_add_u32 v2, {t1}, v16')
        a(f's_mul_i32 {t1}, {sCh}, {UTS}\ns_mul_i32 {t2}, {sHalf}, 768\ns_sub_u32 {t1}, {t1}, {t2}\ns_add_u32 {t1}, {t1}, {UTL}')
        a(f'v_mul_u32_u24 v3, 96, v14\nv_lshl_add_u32 v3, v15, 4, v3\nv_add_u32 v3, {t1}, v3')
        a(f's_mul_i32 {t1}, {sW}, 9216\nv_mul_u32_u24 v4, 144, v14\nv_lshl_add_u32 v4, v15, 4, v4\nv_add_u32 v4, {t1}, v4')
        a('v_lshrrev_b32 v5, 3, v0\nv_mul_u32_u24 v5, 144, v5\nv_and_b32 v16, 7, v0\nv_lshl_add_u32 v5, v16, 4, v5')
        E = lambda j: 64 + 6 * j
        B_ = AK + 8

        def link(j, prev):
            for e in range(2):
                if prev is None: a(f'v_mov_b32 v{E(j)+e}, 0')
                else: a(f'v_mov_b32_dpp v{E(j)+e}, v{prev+e} wave_ror:1 row_mask:0xf bank_mask:0xf')
            for e in range(2):
                a(f'v_mov_b32_dpp v{E(j)+e}, v{E(j)+4+e} wave_shr:1 row_mask:0xf bank_mask:0xf')
        a(f's_cmp_eq_u32 {sHalf}, 1\ns_cbranch_scc1 L_x1')
        a('s_mov_b64 exec, 1')
        a(f'v_add_f32 v{AK}, {sDsk}, v{AK}')
        a('s_mov_b64 exec, -1')
        a('s_waitcnt lgkmcnt(1)')
        for e in range(11): a(f'v_add_f32 v{AK+e}, v{AK+e}, v{48+e}')
        for e in range(4): a(f'v_cvt_pk_bf16_f32 v{E(0)+2+e}, v{AK+2*e}, v{AK+2*e+1}')
        for e, (x, y) in enumerate(((0, 0), (0, 1), (1, 1), (2, 2))):
            a(f'v_cvt_pk_bf16_f32 v{E(1)+2+e}, v{B_+x}, v{B_+y}')
        link(0, None)
        a('s_branch L_x2')
        a('L_x1:')
        a('s_waitcnt lgkmcnt(0)')
        for e in range(9, 15): a(f'v_add_f32 v{AK+e}, v{AK+e}, v{48+e}')
        a(f'v_cvt_pk_bf16_f32 v76, v{B_+1}, v{B_+1}\nv_cvt_pk_bf16_f32 v77, v{B_+2}, v{B_+2}')
        for st in range(2):
            a0, a8 = B_ + 3 + 2 * st, B_ + 4 + 2 * st
            r = E(st) + 2
            a(f'v_cndmask_b32 v13, v{a0}, v{a8}, s[62:63]')
            a(f'v_cvt_pk_bf16_f32 v{r}, v{a0}, v{a0}\nv_cvt_pk_bf16_f32 v{r+1}, v{a0}, v{a0}')
            a(f'v_cvt_pk_bf16_f32 v{r+2}, v13, v{a8}\nv_cvt_pk_bf16_f32 v{r+3}, v{a8}, v{a8}')
        link(0, 76)
        a('L_x2:')
        link(1, E(0) + 4)
        for j in range(2):
            r = 80 + 12 * j
            a(f'ds_write_b128 v12, {v(E(j)+2,4)} offset:{KC+64+1024*j}')
            for e in range(4): a(f'v_alignbit_b32 v{r+e}, v{E(j)+e+2}, v{E(j)+e+1}, 16')
            a(f'ds_write_b128 v12, {v(r,4)} offset:{KC+64+1024*j+4160}')
            for e in range(4): a(f'v_mov_b32 v{r+4+e}, v{E(j)+e+1}')
            a(f'ds_write_b128 v12, {v(r+4,4)} offset:{KC+64+1024*j+2*4160}')
            for e in range(4): a(f'v_alignbit_b32 v{r+8+e}, v{E(j)+e+1}, v{E(j)+e}, 16')
            a(f'ds_write_b128 v12, {v(r+8,4)} offset:{KC+64+1024*j+3*4160}')
        a('v_lshrrev_b32 v13, 2, v0\nv_mul_u32_u24 v13, 96, v13\nv_and_b32 v16, 3, v0\nv_lshl_add_u32 v13, v16, 4, v13')
        a(f's_mov_b32 {t1}, 0x05040100\ns_mov_b32 {t2}, 0x07060302')
        if o['astamp']: a('s_memtime s[90:91]')
        a('s_waitcnt vmcnt(0)')
        if o['localY']: a('v_cmp_ne_u32 s[64:65], s64, v7')
        for cch in range(2):
            for k in range(4):
                a(f'v_perm_b32 v{104+4*cch+k}, v{20+6-2*k}, v{20+7-2*k}, {t2 if cch else t1}')
            a(f'ds_write_b128 v13, {v(104+4*cch,4)} offset:{UTL+cch*UTS+15*96}')
        self.page('A3', 'L_backA')
        if o['prioA2'] != o['prioA']: a(f's_setprio {o["prioA2"]}')
        a('s_waitcnt lgkmcnt(0)\ns_barrier')
        self.stamp(5)
        CA = lambda c, bi: 32 + 8 * c + 4 * bi
        FA = lambda b, q, bi: 64 + 48 * b + 8 * q + 4 * bi
        FB = lambda b, c: 64 + 48 * b + 32 + 4 * c

        def creads(k):
            b = k % 2
            L = [f'ds_read_b128 {v(FB(b,q),4)}, v3 offset:{96*(15+16*q-k)}' for q in range(4)]
            for q in range(4):
                for bi in range(2):
                    for h in range(2):
                        L.append(f'ds_read_b64 {v(FA(b,q,bi)+2*h,2)}, v2 offset:{KC+64*k+1024*q+32*bi+8*h}')
            return L
        for x in creads(0): a(x)
        for k in range(8 - o['nconv'], 8):
            if o['sigp'] and k == o['nconv0']:
                if o['localY']:
                    a(f's_lshl_b32 {t1}, {sP}, 13\ns_add_u32 {t1}, {t1}, {YT}\nv_lshrrev_b32 v16, 2, v0\nv_lshlrev_b32 v16, 7, v16')
                    a(f'buffer_load_dword v17, v16, {SWS}, {t1} offen sc1')
                    a(f's_mov_b32 {t1}, {FY-FU}\nbuffer_load_dword v17, v6, {SWS}, {t1} offen sc1')
                nowait = self.lab('nowait')
                a(f's_cmp_lg_u32 {sW}, 0\ns_cbranch_scc1 {nowait}')
                a(f's_lshl_b32 {t1}, s2, 7\ns_add_u32 {t1}, {t1}, {FS}\nv_mov_b32 v16, {t1}')
                self.poll('v7', 'v16', SWS, sTag, sCnt, '1', sleep=3)
                a(f'{nowait}:\ns_waitcnt vmcnt(0)\ns_barrier')
                if o['prioA3'] != o['prioA2']: a(f's_setprio {o["prioA3"]}')
            R = creads(k + 1) if k < 7 else []
            n = 0
            for q in range(4):
                a(f's_waitcnt lgkmcnt({min(15, 12 - 4*q + (n if R else 0))})')
                for c1 in range(4 - q):
                    for bi in range(2):
                        c = '0' if (k == 0 and q == 0) else v(CA(c1 + q, bi), 4)
                        a(f'v_mfma_f32_16x16x32_bf16 {v(CA(c1+q,bi),4)}, {v(FA(k%2,q,bi),4)}, {v(FB(k%2,c1),4)}, {c}')
                        if R: a(R[n])
                        n += 1
        self.stamp(6)
        a(f's_setprio {o["prioA4"]}')
        a('s_barrier')
        for c in range(4):
            for bi in range(2):
                a(f'ds_write_b128 v4, {v(CA(c,bi),4)} offset:{c*2304+bi*64}')
        a(f's_lshl_b32 {t1}, {sP}, 13\ns_add_u32 {t1}, {t1}, {YT}\ns_add_u32 {t2}, {t1}, 4096\nv_lshlrev_b32 v13, 4, v0')
        a('s_waitcnt lgkmcnt(0)\ns_barrier')
        for j in range(2):
            for w4 in range(4):
                a(f'ds_read_b128 {v(64+16*j+4*w4,4)}, v5 offset:{w4*9216+j*4608}')
        for j in range(2):
            r = 64 + 16 * j
            a(f's_waitcnt lgkmcnt({4-4*j})')
            for cch in range(2):
                for e in range(4):
                    a(f'v_add_f32 v{r+8*cch+e}, v{r+8*cch+e}, v{r+8*cch+4+e}')
            for e in range(4): a(f'v_cvt_pk_bf16_f32 v{96+4*j+e}, v{r+e}, v{r+8+e}')
            if not o['localY']: a(f'buffer_store_dwordx4 {v(96+4*j,4)}, v13, {SWS}, {t2 if j else t1} offen sc1')
        if o['localY']:
            a('s_cmp_eq_u64 s[64:65], 0\ns_cbranch_scc1 L_ynear')
            for j in range(2): a(f'buffer_store_dwordx4 {v(96+4*j,4)}, v13, {SWS}, {t2 if j else t1} offen sc1')
            a('s_branch L_ydone\nL_ynear:')
            for j in range(2): a(f'buffer_store_dwordx4 {v(96+4*j,4)}, v13, {SWS}, {t2 if j else t1} offen')
            a('L_ydone:')
        a(f'v_add_u32 v6, {FY-FU}, v6')
        a(f's_lshl_b32 {t1}, {sW}, 1\nv_xor_b32 v14, {t1}, v14\nv_lshlrev_b32 v14, 4, v14')
        a(f'v_lshl_add_u32 v2, v15, 13, v14\nv_xor_b32 v3, 16, v2\nv_add_u32 v3, {4*8192-1024}, v3')
        a(f's_lshl_b32 {t1}, {sW}, 2\nv_lshrrev_b32 v16, 5, v1\nv_add_u32 v16, {t1}, v16\nv_and_b32 v17, 7, v1')
        a('v_xor_b32 v16, v16, v17\nv_lshlrev_b32 v16, 4, v16\nv_lshl_add_u32 v16, v17, 10, v16')
        a('v_bfe_u32 v18, v1, 3, 2\nv_lshl_add_u32 v4, v18, 2, v16\nv_xor_b32 v5, 32, v4')
        a('v_lshrrev_b32 v18, 3, v1\nv_mul_u32_u24 v8, 1792, v18\nv_lshl_add_u32 v8, v17, 4, v8')
        a(f's_add_u32 {t0}, {sFl}, {FY}')
        a('s_waitcnt vmcnt(0)\ns_barrier')
        self.flag_store(sW, t0, SWS, sTag, 'v29', 'v30', near='s[64:65]' if o['localY'] else None)
        self.stamp(7)
        a(f's_lshl_b32 {t0}, {sR}, 2\ns_add_u32 {t0}, {t0}, {sW}\ns_mul_i32 {t0}, {t0}, {16*1792}')
        a(f's_lshl_b32 {t1}, {sG}, 7\ns_add_u32 {t0}, {t0}, {t1}\ns_add_u32 {t2}, {t0}, {8*1792}')
        a(f's_add_u32 {t3}, {t3}, {YT}\ns_lshl_b32 {t1}, {sW}, 11')
        a(f's_add_u32 m0, {t1}, {TILE}')
        if o['atouch']: a(f'v_mov_b32 v19, 0\nbuffer_load_dword v19, v19, {SOUT}, {t0} offen')
        nopoll = self.lab('nopoll')
        a(f's_cmp_lg_u32 {sW}, 0\ns_cbranch_scc1 {nopoll}')
        if not o['localY']: a('s_waitcnt vmcnt(0)')
        self.poll('v7', 'v6', SWS, sTag, sCnt, '-1', sleep=o['ysleep'] or 24, lazy=bool(o['ysleep']))
        a(f'{nopoll}:')
        a('s_barrier')
        a(f'buffer_load_dwordx4 v2, {SWS}, {t3} offen sc1 lds')
        a(f'buffer_load_dwordx4 v3, {SWS}, {t3} offen offset:1024 sc1 lds')
        a('s_waitcnt vmcnt(0)\ns_barrier')
        self.stamp(8)
        for j in range(2):
            for e in range(4):
                a(f'ds_read_b32 v{20+4*j+e}, v{4+j} offset:{TILE+e*256}')
        a('s_waitcnt lgkmcnt(4)')
        a(f'buffer_store_dwordx4 v[20:23], v8, {SOUT}, {t0} offen' + ' sc1' * (o['outsc'] & 1))
        a('s_waitcnt lgkmcnt(0)')
        a(f'buffer_store_dwordx4 v[24:27], v8, {SOUT}, {t2} offen' + ' sc1' * (o['outsc'] & 1))
        self.stamp(9)
        self.dump_stamps(SWS, sW)
        a('s_endpgm')
        if o['mon']:
            a('L_mon:\ns_cmp_lg_u32 s2, 0\ns_cbranch_scc1 L_exit\ns_cmp_lg_u32 s36, 0\ns_cbranch_scc1 L_exit')
            a('s_waitcnt lgkmcnt(0)\ns_mov_b32 s40, 0\ns_memrealtime s[44:45]\ns_waitcnt lgkmcnt(0)')
            a('L_mon1:\ns_memtime s[46:47]\ns_memrealtime s[48:49]\ns_waitcnt lgkmcnt(0)')
            a('s_sub_u32 s50, s48, s44\ns_cmp_lt_i32 s50, 0\ns_cbranch_scc1 L_mon1')
            a('s_mov_b32 m0, s40\nv_writelane_b32 v8, s46, m0\nv_writelane_b32 v9, s48, m0\ns_add_u32 s44, s44, 25')
            a('s_add_u32 s40, s40, 1\ns_cmp_lt_u32 s40, 64\ns_cbranch_scc1 L_mon1')
            self.srd(4, 28, WS_SIZE)
            a('v_lshlrev_b32 v2, 3, v1\nv_add_u32 v2, 0x4a000, v2\nbuffer_store_dwordx2 v[8:9], v2, s[4:7], 0 offen\ns_endpgm')
        a('L_idle:')
        if o['mix']: a(f's_lshl_b32 {t0}, {sR}, 2\ns_add_u32 {t0}, {t0}, {sW}')
        else: a(f's_lshl_b32 {t0}, {sR}, 1\ns_add_u32 {t0}, {t0}, {sG}\ns_lshl_b32 {t0}, {t0}, 2\ns_add_u32 {t0}, {t0}, {sW}')
        a(f's_mul_i32 {t0}, {t0}, 3200\nv_min_u32 v2, 24, v1\nv_lshl_add_u32 v2, v2, 7, {t0}\ns_waitcnt lgkmcnt(0)')
        self.srd(4, 22, 448 * 896)
        a('buffer_load_dword v3, v2, s[4:7], 0 offen')
        self.tlb_warm()
        a('s_branch L_mon' if o['mon'] else 's_endpgm')
        a('L_uwait:')
        self.poll('v7', 'v6', SWS, sTag, sCnt, '-1', sleep=8)
        a('s_branch L_uback')

    def build(self):
        a = self.a
        a('s_load_dwordx16 s[4:19], s[0:1], 0')
        a('s_load_dwordx8 s[20:27], s[0:1], 64')
        a('s_load_dwordx2 s[28:29], s[0:1], 96')
        if self.o['afirst']:
            a('s_cmp_ge_u32 s2, 256\ns_cbranch_scc1 L_notA')
            self.A_prologue()
            a('s_branch L_roleA\nL_notA:')
        else:
            a('s_cmp_lt_u32 s2, 256\ns_cbranch_scc1 L_roleA')
        a('s_cmp_ge_u32 s2, 512\ns_cbranch_scc1 L_exit')
        self.B_prologue()
        a('L_exit:\ns_endpgm')
        a('L_roleA:')
        if not self.o['afirst']: self.A_prologue()
        if self.o['aexit'] == 1: a('s_endpgm')
        n0 = len(a.L)
        self.role_A()
        if self.o['amem'] != 7:
            from asmlib import Ins
            half = [i for i in range(n0, len(a.L)) if a.L[i].mn.startswith('v_mfma_f32_16x16')][0]
            for i in range(n0, len(a.L)):
                x = a.L[i]
                bit = 4 if 's[8:11]' in x.text else (1 if i < half else 2)
                if self.o['amem'] & bit: continue
                if x.mn.startswith('buffer_'): a.L[i] = Ins('s_nop 0')
                if x.mn.startswith('v_cmp_ne_u32') and 's40' in x.text: a.L[i] = Ins('s_mov_b64 vcc, 0')
        self.role_B()
        a('L_codeend:')
        body = a.text()
        hdr = HEADER
        if self.o['stamps']: hdr = f'; swap=1 rt={self.o["rt"]}\n' + hdr
        return (hdr + '.amdgcn_target "amdgcn-amd-amdhsa--gfx950"\n.text\n'
                f'.globl {NAME}_kernel\n.p2align 12\n.p2align 8\n.type {NAME}_kernel,@function\n{NAME}_kernel:\n'
                + body +
                f""".section .rodata,"a"
.p2align 6
.amdhsa_kernel {NAME}_kernel
  .amdhsa_next_free_vgpr 256
  .amdhsa_next_free_sgpr 102
  .amdhsa_accum_offset 256
  .amdhsa_group_segment_fixed_size 0
  .amdhsa_kernarg_size 104
  .amdhsa_user_sgpr_count 2
  .amdhsa_user_sgpr_kernarg_segment_ptr 1
  .amdhsa_system_sgpr_workgroup_id_x 1
.end_amdhsa_kernel
""")


if __name__ == '__main__':
    opt = {}
    out = f'cdna_kernels/{NAME}.s'
    for x in sys.argv[1:]:
        k, val = x.split('=')
        if k == 'out': out = val
        else: opt[k] = int(val)
    g = Gen(**opt)
    open(out, 'w').write(g.build())
    print('wrote', out, 'nops added', g.a.nops_added)
```
